```python
import torch

def _softmax(x, axis=-1):
    return torch.softmax(x, dim=axis)
def _gelu(x):
    return torch.nn.functional.gelu(x, approximate="tanh")
def _silu(x):
    return torch.nn.functional.silu(x)
def _sigmoid(x):
    return torch.sigmoid(x)
def _layernorm(x, axis=-1, eps=1e-5):
    m = x.mean(dim=axis, keepdim=True)
    v = x.var(dim=axis, keepdim=True, unbiased=False)
    return (x - m) / torch.sqrt(v + eps)
def _scatter_add(tgt, idx, src, axis=0):
    return tgt.clone().index_add_(axis, idx, src)
def _segment_sum(src, seg, n):
    out = torch.zeros((n,) + src.shape[1:], dtype=src.dtype)
    return out.index_add_(0, seg, src)
def _pad(x, pw):
    flat = tuple(v for pair in reversed(pw) for v in pair)
    return torch.nn.functional.pad(x, flat)

kernel_name = 'parallel_sum__gqa_block_cached__glu_gated_glu__decode'

def setup_inputs():

    _w = (lambda a: (lambda t: t.to(torch.bfloat16) if t.is_floating_point() else t)(torch.as_tensor(a)))
    def _A_setup():
        B, Sq, D = 2, 1, 640
        Hq, Hkv, Sk, Dh = 32, 32, 8192, 192
        assert Hq % Hkv == 0, (Hq, Hkv)
        return {
            "x": _w((lambda *s: torch.randn(*s, dtype=torch.bfloat16) * 0.05)(B, Sq, D)),
            "k_cache": _w((lambda *s: torch.randn(*s, dtype=torch.bfloat16) * 3.2)(B, Hkv, Sk, Dh)),
            "v_cache": _w((lambda *s: torch.randn(*s, dtype=torch.bfloat16) * 1.6)(B, Hkv, Sk, Dh)),
            "wq": _w((lambda *s: torch.randn(*s, dtype=torch.bfloat16) * 3.2)(D, Hq * Dh) * (D ** -0.5)),
            "wo": _w((lambda *s: torch.randn(*s, dtype=torch.bfloat16) * 1.6)(Hq * Dh, D) * ((Hq * Dh) ** -0.5)),
        }
    _A_in = _A_setup()

    def _B_setup():
        B, S, D, F = 2, 1, 640, 1536
        return {
            "x": _w((lambda *s: torch.randn(*s, dtype=torch.bfloat16) * 0.05)(B, S, D)),
            "w_gate": _w((lambda *s: torch.randn(*s, dtype=torch.bfloat16) * 0.2)(D, F)),
            "w_up": _w((lambda *s: torch.randn(*s, dtype=torch.bfloat16) * 0.05)(D, F)),
            "w_down": _w((lambda *s: torch.randn(*s, dtype=torch.bfloat16) * 0.05)(F, D)),
        }
    _B_in = _B_setup()

    return {
        "A_x": _A_in["x"],
        "A_k_cache": _A_in["k_cache"],
        "A_v_cache": _A_in["v_cache"],
        "A_wq": _A_in["wq"],
        "A_wo": _A_in["wo"],
        "B_x": _B_in["x"],
        "B_w_gate": _B_in["w_gate"],
        "B_w_up": _B_in["w_up"],
        "B_w_down": _B_in["w_down"],
    }

def reference(A_x, A_k_cache, A_v_cache, A_wq, A_wo, B_x, B_w_gate, B_w_up, B_w_down):
    def _A_ref(x, k_cache, v_cache, wq, wo):
        B, Sq, D = x.shape
        Hq, Dh = 32, 192
        Hkv = k_cache.shape[1]
        rep = Hq // Hkv
        q = (lambda x, *d: x.permute(*d))((x @ wq).reshape(B, Sq, Hq, Dh), 0, 2, 1, 3)
        k = (lambda x, n, axis: torch.repeat_interleave(x, n, dim=axis))(k_cache, rep, axis=1)
        v = (lambda x, n, axis: torch.repeat_interleave(x, n, dim=axis))(v_cache, rep, axis=1)
        scores = torch.einsum("bhqd,bhkd->bhqk", q, k) * (Dh ** -0.5)
        p = _softmax(scores, axis=-1)
        o = torch.einsum("bhqk,bhkd->bhqd", p, v)
        return (lambda x, *d: x.permute(*d))(o, 0, 2, 1, 3).reshape(B, Sq, Hq * Dh) @ wo

    def _B_ref(x, w_gate, w_up, w_down):
        g = torch.einsum("bsd,df->bsf", x, w_gate)
        u = torch.einsum("bsd,df->bsf", x, w_up)
        h = _sigmoid(g) * u
        return torch.einsum("bsf,fd->bsd", h, w_down)

    x = A_x
    xn = _layernorm(x, axis=-1)
    return x + _A_ref(xn, A_k_cache, A_v_cache, A_wq, A_wo) + _B_ref(xn, B_w_gate, B_w_up, B_w_down)
```

```python
import re
TRANS=('v_exp_f32','v_log_f32','v_rcp_f32','v_rsq_f32','v_sqrt_f32','v_sin_f32','v_cos_f32')
def regs(tok):
    tok=tok.strip()
    tok=tok.lstrip('-')
    if tok.startswith('abs(') : tok=tok[4:-1]
    if tok.startswith('|'): tok=tok.strip('|')
    m=re.fullmatch(r'([vsa])(\d+)',tok)
    if m: return {(m.group(1),int(m.group(2)))}
    m=re.fullmatch(r'([vsa])\[(\d+):(\d+)\]',tok)
    if m: return {(m.group(1),i) for i in range(int(m.group(2)),int(m.group(3))+1)}
    if tok in('vcc','vcc_lo','vcc_hi'): return {('s','vcc')}
    if tok=='exec': return {('s','exec')}
    if tok=='m0': return {('s','m0')}
    return set()
class I:
    def __init__(s,text):
        s.text=text
        t=text.split(';')[0].strip()
        p=t.split(None,1)
        s.op=p[0]
        rest=p[1] if len(p)>1 else ''
        ops=[x.strip() for x in rest.split(',')] if rest else []
        if ops:
            last=ops[-1].split()
        toks=[]
        for o in ops:
            w=o.split()
            if w: toks.append(w[0])
        s.toks=toks
        s.mod=rest
        op=s.op
        s.valu=op.startswith('v_') and not op.startswith('v_mfma')
        s.mfma=op.startswith('v_mfma')
        s.salu=op.startswith('s_')
        s.ds=op.startswith('ds_')
        s.vmem=op.startswith('buffer_') or op.startswith('global_')
        s.dpp=('_dpp' in op) or ('row_' in rest) or ('quad_perm' in rest)
        s.trans=any(op.startswith(x) for x in TRANS)
        R=[regs(x) for x in toks]
        U=lambda L: set().union(*L) if L else set()
        s.w=set(); s.r=set(); s.c=set(); s.ab=set(); s.stdata=set()
        if s.mfma:
            s.w=R[0]; s.ab=R[1]|R[2]; s.c=R[3]; s.r=s.ab|s.c
        elif op.startswith('v_permlane'):
            s.w=R[0]|R[1]; s.r=s.w
        elif op.startswith('v_cmp'):
            s.w=R[0]; s.r=U(R[1:])
        elif s.valu:
            s.w=R[0]; s.r=U(R[1:])
            if s.dpp or op.startswith('v_fmac') or op.startswith('v_writelane') or op.startswith('v_dot2c'): s.r|=R[0]
            if op.startswith('v_cndmask') and len(toks)==3: s.r|={('s','vcc')}
            if '_co_' in op: s.w|=R[1]
        elif s.ds:
            if op.startswith('ds_read') or '_rtn' in op or 'permute' in op or 'swizzle' in op:
                s.w=R[0]; s.r=U(R[1:])
            else: s.r=U(R)
        elif s.vmem:
            if 'load' in op and ' lds' not in (' '+rest) and 'lds' not in op:
                s.w=R[0]; s.r=U(R[1:])
            elif 'atomic' in op and 'sc0' in rest:
                s.w=R[0]; s.r=U(R[1:])
            else:
                s.r=U(R)
                if 'store' in op and ('x4' in op or 'x3' in op):
                    s.stdata = R[0] if op.startswith('buffer') else R[1]
            s.ldsdma = (' lds' in (' '+rest)) or ('lds' in op)
        elif s.salu:
            if op.startswith('s_cmp') or op.startswith('s_cbranch') or op in('s_branch','s_waitcnt','s_nop','s_barrier','s_sleep','s_setprio','s_endpgm'):
                s.r=U(R)
            else:
                s.w=R[0] if R else set(); s.r=U(R[1:])
                if 'saveexec' in op: s.w|={('s','exec')}
        s.states = 1
        if op=='s_nop': s.states=int(toks[0])+1
def need(a,b):
    n=0
    va=lambda S:{x for x in S if x[0] in 'va'}
    sa=lambda S:{x for x in S if x[0]=='s'}
    if a.valu and b.mfma and va(a.w)&b.r: n=max(n,2)
    if a.mfma:
        if b.mfma:
            if a.w&b.ab: n=max(n,8)
            if a.w&b.c and a.w!=b.c: n=max(n,6)
            if a.w&b.w and a.w!=b.c: n=max(n,8)
        elif (b.valu or b.ds or b.vmem) and (a.w&(b.r|b.w)): n=max(n,8)
        if b.valu and (a.c&b.w): n=max(n,3)
    if a.valu and b.valu and b.dpp and va(a.w)&b.r: n=max(n,2)
    if a.valu and b.op.startswith('v_permlane') and va(a.w)&b.r: n=max(n,2)
    if a.valu and (b.op.startswith('v_readfirstlane') or b.op.startswith('v_readlane')) and va(a.w)&b.r: n=max(n,1)
    if a.trans and b.valu and not b.trans and a.w&b.r: n=max(n,1)
    if a.trans and (b.mfma) and a.w&b.r: n=max(n,2)
    if a.valu and sa(a.w):
        if b.valu and sa(a.w)&b.r: n=max(n,2)
        if b.vmem and sa(a.w)&b.r: n=max(n,5)
    if a.salu and ('s','m0') in a.w and b.vmem and getattr(b,'ldsdma',False): n=max(n,1)
    if a.stdata and (b.valu or b.mfma) and a.stdata&b.w: n=max(n,2)
    if a.stdata and (b.ds or b.vmem) and a.stdata&b.w: n=max(n,1)
    return n
def check(lines):
    ins=[]; labels={}
    for ln in lines:
        t=ln.split(';')[0].strip()
        if not t or t.startswith('.'): continue
        if t.endswith(':'):
            labels[t[:-1]]=len(ins); continue
        ins.append(I(t))
    errs=[]
    def scan(seq):
        for j in range(len(seq)):
            d=0
            for i in range(j-1,max(-1,j-14),-1):
                if seq[i].op in('s_branch','s_endpgm') and seq[i] is not scan.allow: break
                n=need(seq[i],seq[j])
                if n>d: errs.append(f"HAZARD need {n} have {d}: [{seq[i].text}] -> [{seq[j].text}]")
                d+=seq[i].states
    scan.allow=None
    scan(ins)
    for k,x in enumerate(ins):
        if x.op.startswith('s_cbranch') or x.op=='s_branch':
            tgt=x.toks[0]
            if tgt in labels:
                a=ins[max(0,k-13):k+1]; b=ins[labels[tgt]:labels[tgt]+13]
                bb=[]
                for y in b:
                    bb.append(y)
                    if y.op in('s_branch','s_endpgm'): break
                scan.allow=x
                scan(a+bb)
                scan.allow=None
    return sorted(set(errs))
```

```python
import sys, struct
from common import *
import hazard

NAME="parallel_sum__gqa_block_cached__glu_gated_glu__decode_kernel"
KVB=201326592; BST=100663296; HST=3145728
F_LAND=0; F_FREE=4; F_Q=12; F_O=16; F_Y=20
QB=256; OB=1024; SC=4096; YL=8192; RING=16384; SLOT=12288; NSLOT=12
LDS_BYTES=RING+SLOT*NSLOT
MLG=4096; QG=32768; GG=425984; YG=688128; WSB=2097152
def f2u(x): return struct.unpack('<I',struct.pack('<f',x))[0]
SCALE=f2u(192**-0.5); LOG2E=f2u(1.4426950408889634)
DPPF="row_mask:0xf bank_mask:0xf"

class G:
    def __init__(s, N=21, TS=0, rot=1, order=1, pace0=14, pace=4, NT=None, tailn=0):
        s.L=[]; s.N=N; s.TS=TS; s.rot=rot; s.order=order; s.uid=0; s.pace0=pace0; s.pace=pace
        s.NT=NT; s.tailn=tailn
    def A(s,x):
        for l in x.split('\n'):
            l=l.strip()
            if l: s.L.append(l)
    def lab(s,p):
        s.uid+=1; return f"L_{p}_{s.uid}"
    def stamp(s,slot):
        if not s.TS: return
        s.A(f"""s_memrealtime s[90:91]
        s_add_u32 s92, s38, 0x20000000
        s_addc_u32 s93, s39, 0
        s_lshl_b32 s94, s2, 6
        s_add_u32 s92, s92, s94
        s_addc_u32 s93, s93, 0
        s_waitcnt lgkmcnt(0)
        v_mov_b32 v2, s90
        v_mov_b32 v3, s91
        global_store_dwordx2 v1, v[2:3], s[92:93] offset:{slot*8}""")
    def poll(s, off, need, sleep=1, cache=None, tmp='s46', vaddr='v1'):
        l=s.lab('pl'); d=s.lab('pd')
        if cache:
            s.A(f"s_cmp_ge_u32 {cache}, {need}\ns_cbranch_scc1 {d}")
            tmp=cache
        s.A(f"""{l}:
        ds_read_b32 v2, {vaddr} offset:{off}
        s_waitcnt lgkmcnt(0)
        v_readfirstlane_b32 {tmp}, v2
        s_cmp_ge_u32 {tmp}, {need}
        s_cbranch_scc1 {d}
        s_sleep {sleep}
        s_sub_u32 s7, s7, 1
        s_cbranch_scc0 {l}
        s_endpgm
        {d}:""")
    def masks(s, m0, t0, t1):
        s.A(f"""v_and_b32 v{t0}, 1, v0
        v_lshlrev_b32 v{t0}, 4, v{t0}
        v_mov_b32 v{t1}, 0xffff
        v_lshlrev_b32 v{t0}, v{t0}, v{t1}
        v_bfe_u32 v{t1}, v0, 1, 2""")
        for r in range(4):
            s.A(f"v_cmp_eq_u32 vcc, {r}, v{t1}\ns_nop 1\nv_cndmask_b32 v{m0+r}, 0, v{t0}, vcc")
    def rowred(s, op, v, t=None):
        for c in ("quad_perm:[1,0,3,2]","quad_perm:[2,3,0,1]","row_half_mirror","row_mirror"):
            s.A(f"s_nop 1\n{op}_dpp v{v}, v{v}, v{v} {c} {DPPF}")
    def swapred(s, op, v, t, which):
        s.A(f"""v_mov_b32 v{t}, v{v}
        s_nop 1
        v_permlane{which}_swap_b32 v{v}, v{t}
        {op} v{v}, v{v}, v{t}""")
    def srd(s, d, ptr, size):
        s.A(f"s_mov_b32 s{d}, s{ptr}\ns_mov_b32 s{d+1}, s{ptr+1}\ns_mov_b32 s{d+2}, {size}\ns_mov_b32 s{d+3}, 0x20000")

    def prologue(s):
        A=s.A
        A("""s_load_dwordx16 s[16:31], s[0:1], 0
        s_load_dwordx8 s[32:39], s[0:1], 64
        s_cmp_ge_u32 s2, 256
        s_cbranch_scc1 L_end
        v_lshrrev_b32 v1, 6, v0
        v_and_b32 v0, 63, v0
        v_readfirstlane_b32 s3, v1
        s_and_b32 s4, s2, 7
        s_lshr_b32 s5, s2, 3
        s_lshr_b32 s6, s5, 3
        s_lshl_b32 s4, s4, 2
        s_add_u32 s4, s4, s6
        s_and_b32 s5, s5, 7
        s_mov_b32 s7, 0x400000
        v_mov_b32 v1, 0
        s_cmp_eq_u32 s3, 0
        s_cbranch_scc0 L_notloader""")

    def loader(s):
        A=s.A; N=s.N
        A("s_setprio 3")
        A("""v_lshrrev_b32 v4, 3, v0
        v_and_b32 v5, 7, v0
        v_lshlrev_b32 v6, 7, v4
        v_lshlrev_b32 v9, 4, v0""")
        for k in range(6):
            A(f"""v_add_u32 v7, {8*k}, v4
            v_mul_u32_u24 v7, 43, v7
            v_lshrrev_b32 v7, 8, v7
            v_xor_b32 v7, v7, v5
            v_lshl_add_u32 v{10+k}, v7, 4, v6""")
        A("s_mul_i32 s40, s4, %d"%HST)
        A("s_mov_b32 s41, 0")
        A(f"s_mov_b32 s42, {RING}")
        A("s_mov_b32 s43, 0")
        A("s_mov_b32 s50, 0\ns_mov_b32 s51, 0")
        A("s_waitcnt lgkmcnt(0)")
        A(f"s_mov_b32 s10, {KVB}\ns_mov_b32 s11, 0x20000")
        s.stamp(0)
        A("L_ld_phase:")
        A("s_lshr_b32 s44, s43, 1")
        if s.order: A("s_xor_b32 s44, s44, s4")
        A(f"""s_and_b32 s44, s44, 1
        s_mul_i32 s44, s44, {BST}
        s_add_u32 s44, s44, s40
        s_and_b32 s45, s43, 1
        s_cselect_b32 s8, s20, s18
        s_cselect_b32 s9, s21, s19
        s_cselect_b64 vcc, -1, 0""")
        for k in range(6):
            A(f"v_cndmask_b32 v{20+k}, v{10+k}, v9, vcc")
        A("s_mov_b32 s45, 0")
        A("L_ld_chunk:")
        A(f"""s_lshr_b32 s47, s41, 1
        s_sub_u32 s47, s47, {NSLOT//2-1}
        s_cbranch_scc1 L_ld_go
        s_waitcnt lgkmcnt(0)
        v_readfirstlane_b32 s50, v3
        s_cmp_ge_u32 s50, s47
        s_cbranch_scc1 L_ld_go
        s_waitcnt vmcnt(0)
        s_mov_b32 s51, s41
        v_mov_b32 v2, s41
        ds_write_b32 v1, v2 offset:{F_LAND}""")
        s.poll(F_FREE, 's47', sleep=1, vaddr='v4')
        A("L_ld_go:")
        if s.rot:
            A("s_add_u32 s46, s45, s5\ns_and_b32 s46, s46, 7")
        else:
            A("s_mov_b32 s46, s5")
        A(f"""s_lshl_b32 s47, s45, 3
        s_add_u32 s46, s46, s47
        s_mul_i32 s46, s46, {SLOT}
        s_add_u32 s46, s46, s44""")
        def body(N, tag):
            pubk=(N-1)%12; pubd=(N-1-pubk)//12
            for k in range(12):
                if k%4==0:
                    A(f"s_add_u32 m0, s42, {k*1024}\ns_add_u32 s47, s46, {k*1024}")
                A(f"s_waitcnt vmcnt({N-1})")
                if k==pubk:
                    A(f"""s_sub_u32 s48, s41, {pubd}
                    s_max_i32 s51, s51, s48
                    v_mov_b32 v2, s51
                    ds_write_b32 v1, v2 offset:{F_LAND}""")
                A(f"buffer_load_dwordx4 v{20+k%6}, s[8:11], s47 offen offset:{(k%4)*1024} nt lds")
                if k==6 and tag=='':
                    A("""s_cmp_eq_u32 s41, 1
                    s_cbranch_scc0 L_ld_nobar
                    s_barrier
                    L_ld_nobar:""")
                if k==9:
                    A(f"""s_and_b32 s48, s41, 1
                    s_xor_b32 s48, s48, 1
                    s_lshl_b32 s48, s48, 2
                    v_mov_b32 v4, s48
                    ds_read_b32 v3, v4 offset:{F_FREE}""")
        assert N>=13
        if s.tailn:
            A(f"s_cmp_ge_u32 s41, {128-s.tailn}\ns_cbranch_scc1 L_ld_tail")
        body(N,'')
        if s.tailn:
            A("s_branch L_ld_next\nL_ld_tail:")
            body(s.NT,'t')
            A("L_ld_next:")
        A(f"""s_add_u32 s42, s42, {SLOT}
        s_cmp_ge_u32 s42, {RING+SLOT*NSLOT}
        s_cselect_b32 s42, {RING}, s42
        s_add_u32 s41, s41, 1
        s_add_u32 s45, s45, 1
        s_cmp_lt_u32 s45, 32
        s_cbranch_scc1 L_ld_chunk
        s_add_u32 s43, s43, 1
        s_cmp_lt_u32 s43, 4
        s_cbranch_scc1 L_ld_phase""")
        NE = s.NT if s.tailn else N
        for x in range((NE-1)//12,-1,-1):
            A(f"v_mov_b32 v2, {128-x}\ns_waitcnt vmcnt({12*x})\nds_write_b32 v1, v2 offset:{F_LAND}")
        s.stamp(3)
        if s.TS:
            A("s_getreg_b32 s90, hwreg(HW_REG_XCC_ID)\nv_mov_b32 v2, s90\nv_mov_b32 v3, 0\nglobal_store_dwordx2 v1, v[2:3], s[92:93] offset:56")
        A("s_endpgm")

    def common2(s):
        A=s.A
        A("L_notloader:")
        A("s_waitcnt lgkmcnt(0)")
        A("s_load_dword s6, s[38:39], 0")
        s.srd(12,38,WSB)
        A("""s_cmp_ge_u32 s3, 14
        s_cbranch_scc1 L_final
        s_cmp_ge_u32 s3, 9
        s_cbranch_scc1 L_hold_bar
        s_cmp_ge_u32 s3, 4
        s_cbranch_scc1 L_stage1
        s_cmp_eq_u32 s3, 3
        s_cbranch_scc1 L_aux""")

    def consumer(s):
        A=s.A
        A("s_sub_u32 s40, s3, 1")
        A("v_lshlrev_b32 v2, 2, v0\nds_write_b32 v2, v1")
        A("""v_and_b32 v8, 15, v0
        v_lshrrev_b32 v9, 4, v0
        v_lshrrev_b32 v10, 1, v8
        v_xor_b32 v10, v10, v9
        v_lshlrev_b32 v10, 4, v10
        v_mad_u32_u24 v4, v8, v11, v10""".replace("v_mad_u32_u24 v4, v8, v11, v10","v_mul_u32_u24 v4, 384, v8\nv_add_u32 v4, v4, v10"))
        A("""v_mul_u32_u24 v5, 768, v9
        v_lshl_add_u32 v5, v8, 4, v5""")
        s.masks(100,10,11)
        A("s_lshl_b32 s47, s40, 2\nv_mov_b32 v3, s47")
        A("s_waitcnt lgkmcnt(0)\ns_barrier")
        A("s_add_u32 s6, s6, 1")
        A(f"""s_mov_b32 s41, 0
        s_mul_i32 s42, s40, {SLOT}
        s_add_u32 s42, s42, {RING}
        s_add_u32 s43, s40, 1
        s_mov_b32 s44, 0
        s_mov_b32 s50, 0""")
        A("L_c_seg:")
        A("s_add_u32 s47, s41, 1")
        s.poll(F_Q,'s47',sleep=2)
        A(f"""s_mul_i32 s47, s41, 384
        v_lshrrev_b32 v9, 4, v0
        v_lshl_add_u32 v2, v9, 4, s47""")
        for j in range(6):
            A(f"ds_read_b128 v[{8+4*j}:{11+4*j}], v2 offset:{QB+64*j}")
        A(f"""s_lshl_b32 s47, s40, 11
        s_add_u32 s47, s47, {SC}
        v_and_b32 v6, 7, v0
        v_lshlrev_b32 v6, 4, v6
        v_bfe_u32 v7, v0, 3, 2
        v_lshl_add_u32 v6, v7, 2, v6
        v_add_u32 v6, s47, v6
        v_lshrrev_b32 v7, 3, v0
        v_lshl_add_u32 v7, v7, 4, s47
        v_mov_b32 v124, 0xff800000
        s_mov_b32 s45, 0""")
        def adv():
            A(f"""s_add_u32 s42, s42, {2*SLOT}
            s_sub_u32 s47, s42, {SLOT*NSLOT}
            s_cmp_ge_u32 s42, {RING+SLOT*NSLOT}
            s_cselect_b32 s42, s47, s42
            s_add_u32 s43, s43, 2
            s_add_u32 s45, s45, 1""")
        A("L_c_k:")
        s.poll(F_LAND,'s43',sleep=1,cache='s50')
        A("v_add_u32 v125, s42, v4\nv_xor_b32 v126, 64, v125")
        k=0
        for j in range(6):
            for t in range(2):
                A(f"ds_read_b128 v[{32+4*k}:{35+4*k}], v{126 if j&1 else 125} offset:{t*6144+(j>>1)*128}")
                k+=1
        A("s_add_u32 s44, s44, 1\nv_mov_b32 v2, s44")
        k=0
        for j in range(6):
            for t in range(2):
                d=80+4*t
                A(f"s_waitcnt lgkmcnt({11-k})")
                A(f"v_mfma_f32_16x16x32_bf16 v[{d}:{d+3}], v[{8+4*j}:{11+4*j}], v[{32+4*k}:{35+4*k}], {'0' if j==0 else f'v[{d}:{d+3}]'}")
                k+=1
        A(f"ds_write_b32 v3, v2 offset:{F_FREE}")
        adv()
        A(f"""s_nop 0
        v_mov_b32_dpp v80, v84 quad_perm:[0,1,2,3] row_mask:0xa bank_mask:0xf
        v_cvt_pk_bf16_f32 v81, v80, v80
        v_and_b32 v81, 0xffff0000, v81
        v_mul_f32 v81, {SCALE:#x}, v81
        v_cvt_pk_bf16_f32 v81, v81, v81
        v_and_b32 v81, 0xffff0000, v81
        v_max_f32 v124, v124, v81
        ds_write_b32 v6, v81
        v_add_u32 v6, 128, v6
        s_cmp_lt_u32 s45, 16
        s_cbranch_scc1 L_c_k""")
        A(f"""s_lshl_b32 s47, s40, 11
        s_add_u32 s47, s47, {SC}
        v_lshl_add_u32 v6, v0, 4, s47
        ds_read_b128 v[32:35], v6
        ds_read_b128 v[36:39], v6 offset:1024""")
        s.rowred('v_max_f32',124)
        s.swapred('v_max_f32',124,2,16)
        A(f"""s_mov_b32 s47, {LOG2E:#x}
        v_mul_f32 v124, s47, v124
        s_waitcnt lgkmcnt(0)""")
        for i in range(8): A(f"v_fma_f32 v{32+i}, v{32+i}, s47, -v124")
        for i in range(8): A(f"v_exp_f32 v{32+i}, v{32+i}")
        A("""v_add_f32 v40, v32, v33
        v_add_f32 v41, v34, v35
        v_add_f32 v42, v36, v37
        v_add_f32 v43, v38, v39
        v_add_f32 v40, v40, v41
        v_add_f32 v42, v42, v43
        v_add_f32 v45, v40, v42""")
        for i in range(8): A(f"v_cvt_pk_bf16_f32 v{32+i}, v{32+i}, v{32+i}")
        A("ds_write_b128 v6, v[32:35]\nds_write_b128 v6, v[36:39] offset:1024")
        s.rowred('v_add_f32',45)
        s.swapred('v_add_f32',45,2,16)
        s.swapred('v_add_f32',45,2,32)
        A(f"""v_mov_b32 v44, v124
        v_mov_b32 v46, s6
        v_mov_b32 v47, s6
        s_lshl_b32 s48, s41, 5
        s_add_u32 s48, s48, s4
        s_lshl_b32 s48, s48, 8
        s_add_u32 s48, s48, {MLG}
        s_lshl_b32 s47, s5, 1
        s_add_u32 s47, s47, s40
        s_lshl_b32 s47, s47, 4
        s_add_u32 s47, s47, s48
        s_mov_b64 exec, 1
        buffer_store_dwordx4 v[44:47], v1, s[12:15], s47 offen sc1
        s_mov_b64 exec, -1""")
        for i in range(12): A(f"v_mov_b32 v{88+i}, 0")
        A("s_mov_b32 s45, 0")
        A("L_c_v:")
        A("s_cmp_eq_u32 s45, 8\ns_cbranch_scc0 L_c_noml")
        A("""v_and_b32 v125, 15, v0
        v_lshlrev_b32 v125, 4, v125
        L_c_ml:
        buffer_load_dwordx4 v[32:35], v125, s[12:15], s48 offen sc1
        s_waitcnt vmcnt(0)
        v_cmp_ne_u32 vcc, s6, v34
        v_cmp_ne_u32 s[52:53], s6, v35
        s_or_b64 vcc, vcc, s[52:53]
        s_cbranch_scc0 L_c_mlok
        s_sleep 4
        s_sub_u32 s7, s7, 1
        s_cbranch_scc0 L_c_ml
        s_endpgm
        L_c_mlok:
        v_mov_b32 v36, v32""")
        s.rowred('v_max_f32',36)
        A("""v_sub_f32 v32, v32, v36
        v_sub_f32 v37, v124, v36
        v_exp_f32 v32, v32
        v_exp_f32 v37, v37
        v_mul_f32 v33, v33, v32""")
        s.rowred('v_add_f32',33)
        A("""v_rcp_f32 v33, v33
        s_nop 0
        v_mul_f32 v127, v37, v33
        L_c_noml:""")
        s.poll(F_LAND,'s43',sleep=1,cache='s50')
        A("v_add_u32 v125, s42, v5\nds_read_b128 v[120:123], v7")
        k=0
        for t in range(4):
            for ty in range(3):
                A(f"ds_read_b128 v[{32+4*k}:{35+4*k}], v125 offset:{t*3072+ty*256}")
                k+=1
        A("s_add_u32 s44, s44, 1\nv_mov_b32 v2, s44\nv_add_u32 v7, 128, v7\ns_waitcnt lgkmcnt(12)")
        for t in range(4):
            for r in range(4):
                A(f"v_and_b32 v{104+4*t+r}, v{120+t}, v{100+r}")
        k=0
        for t in range(4):
            for ty in range(3):
                d=88+4*ty
                A(f"s_waitcnt lgkmcnt({11-k})")
                A(f"v_mfma_f32_16x16x32_bf16 v[{d}:{d+3}], v[{32+4*k}:{35+4*k}], v[{104+4*t}:{107+4*t}], v[{d}:{d+3}]")
                k+=1
        A(f"ds_write_b32 v3, v2 offset:{F_FREE}")
        adv()
        A("s_cmp_lt_u32 s45, 16\ns_cbranch_scc1 L_c_v")
        A(f"""s_mul_i32 s47, s41, 1536
        s_mul_i32 s48, s40, 768
        s_add_u32 s47, s47, s48
        s_add_u32 s47, s47, {OB}
        v_bfe_u32 v32, v0, 3, 1
        v_lshrrev_b32 v33, 4, v0
        v_and_b32 v34, 7, v0
        v_lshlrev_b32 v125, 9, v32
        v_lshl_add_u32 v125, v33, 6, v125
        v_lshl_add_u32 v125, v34, 3, v125
        v_add_u32 v125, s47, v125
        v_lshlrev_b32 v32, 9, v32
        v_sub_u32 v126, v125, v32""")
        for r in range(4):
            A(f"v_mov_b32_dpp v{88+r}, v{96+r} quad_perm:[0,1,2,3] row_mask:0xf bank_mask:0xc")
        for r in range(8):
            A(f"v_mul_f32 v{88+r}, v127, v{88+r}")
        A(f"""v_cvt_pk_bf16_f32 v32, v88, v89
        v_cvt_pk_bf16_f32 v33, v90, v91
        v_cvt_pk_bf16_f32 v34, v92, v93
        v_cvt_pk_bf16_f32 v35, v94, v95
        ds_write_b64 v125, v[32:33]
        s_mov_b32 exec_lo, 0x00ff00ff
        s_mov_b32 exec_hi, 0xff00ff00
        ds_write_b64 v126, v[34:35] offset:256
        s_mov_b64 exec, 1
        v_mov_b32 v2, 1
        s_waitcnt lgkmcnt(0)
        ds_add_u32 v1, v2 offset:{F_O}
        s_mov_b64 exec, -1
        s_add_u32 s41, s41, 1
        s_cmp_lt_u32 s41, 2
        s_cbranch_scc1 L_c_seg""")
        s.stamp(4)
        A("s_endpgm")

    def gather8(s, voff, sbase, stride, d0, vt, vtag, sleep=2):
        A=s.A
        l=s.lab('g8'); ok=s.lab('g8ok')
        A(f"{l}:")
        for j in range(8):
            if j*stride<4096:
                A(f"buffer_load_dwordx4 v[{d0+4*j}:{d0+4*j+3}], v{voff}, s[12:15], {sbase} offen offset:{j*stride} sc1")
            else:
                if (j-1)*stride<4096 : A(f"s_add_u32 s49, {sbase}, {j*stride}"); j0=j
                A(f"buffer_load_dwordx4 v[{d0+4*j}:{d0+4*j+3}], v{voff}, s[12:15], s49 offen offset:{(j-j0)*stride} sc1")
        A(f"v_mov_b32 v{vt}, 0")
        for j in range(8):
            A(f"s_waitcnt vmcnt({7-j})")
            for r in range(4):
                A(f"v_bitop3_b32 v{vt}, v{vt}, v{d0+4*j+r}, s6 bitop3:0xf6")
        A(f"""v_and_b32 v{vt}, 0xff, v{vt}
        v_cmp_ne_u32 vcc, 0, v{vt}
        s_cbranch_vccz {ok}
        s_sleep {sleep}
        s_sub_u32 s7, s7, 1
        s_cbranch_scc0 {l}
        s_endpgm
        {ok}:""")
        for i in range(32):
            A(f"v_and_b32 v{d0+i}, 0xffffff00, v{d0+i}")
        for st in (16,8,4):
            for i in range(st):
                A(f"v_add_f32 v{d0+i}, v{d0+i}, v{d0+i+st}")

    def aux(s):
        A=s.A
        A("L_aux:")
        s.srd(8,32,1966080)
        A("""v_min_u32 v4, 47, v0
        v_lshlrev_b32 v5, 4, v4
        v_lshrrev_b32 v6, 3, v4
        v_lshlrev_b32 v6, 6, v6
        v_and_b32 v7, 7, v4
        v_lshl_add_u32 v6, v7, 1, v6""")
        s.masks(100,10,11)
        A("s_waitcnt lgkmcnt(0)\ns_barrier\ns_add_u32 s6, s6, 1\ns_mov_b32 s41, 0")
        A("L_a_q:")
        if s.order: A("s_xor_b32 s42, s41, s4\ns_and_b32 s42, s42, 1")
        else: A("s_mov_b32 s42, s41")
        A(f"""s_lshl_b32 s43, s4, 1
        s_add_u32 s42, s42, s43
        s_mul_i32 s42, s42, 6144
        s_add_u32 s42, s42, {QG}""")
        s.gather8(5,'s42',768,8,3,None)
        A(f"""v_cvt_pk_bf16_f32 v8, v8, v9
        v_cvt_pk_bf16_f32 v10, v10, v11
        ds_write_b16 v6, v8 offset:{QB}
        ds_write_b16_d16_hi v6, v8 offset:{QB+16}
        ds_write_b16 v6, v10 offset:{QB+32}
        ds_write_b16_d16_hi v6, v10 offset:{QB+48}
        s_add_u32 s41, s41, 1
        v_mov_b32 v2, s41
        v_add_u32 v6, 384, v6
        s_waitcnt lgkmcnt(0)
        ds_write_b32 v1, v2 offset:{F_Q}""")
        if s.TS:
            A("s_cmp_eq_u32 s41, 1\ns_cbranch_scc0 L_a_ns")
            s.stamp(2)
            A("L_a_ns:")
        A("s_cmp_lt_u32 s41, 2\ns_cbranch_scc1 L_a_q")
        A(f"""v_and_b32 v4, 15, v0
        v_lshrrev_b32 v9, 4, v0
        v_mul_u32_u24 v5, 1280, v9
        v_lshl_add_u32 v5, v4, 4, v5
        v_lshlrev_b32 v6, 30, v9
        v_and_b32 v6, 0x80000000, v6
        v_or_b32 v6, v6, v5
        s_lshl_b32 s42, s4, 3
        s_add_u32 s42, s42, s5
        s_mul_i32 s43, s42, {6*1280}
        s_add_u32 s44, s43, {4*1280}""")
        for c in range(5):
            A(f"buffer_load_dwordx4 v[{40+4*c}:{43+4*c}], v5, s[8:11], s43 offen offset:{256*c} nt")
        for c in range(5):
            A(f"buffer_load_dwordx4 v[{60+4*c}:{63+4*c}], v6, s[8:11], s44 offen offset:{256*c} nt")
        A(f"""v_bfe_u32 v4, v0, 1, 1
        v_lshl_add_u32 v4, v4, 2, v9
        v_min_u32 v4, 5, v4
        s_mul_i32 s45, s5, 6
        v_add_u32 v4, s45, v4
        v_lshrrev_b32 v5, 5, v4
        v_lshlrev_b32 v5, 4, v5
        v_and_b32 v6, 8, v0
        v_add_u32 v5, v5, v6
        v_and_b32 v6, 7, v4
        v_add_u32 v5, v5, v6
        v_lshlrev_b32 v5, 4, v5
        v_and_b32 v6, 1, v0
        v_lshl_add_u32 v5, v6, 9, v5
        v_bfe_u32 v7, v4, 3, 2
        s_lshl_b32 s42, s4, 13
        s_add_u32 s42, s42, {GG}""")
        s.gather8(5,'s42',1024,8,3,None)
        for r in (1,2,3):
            A(f"v_cmp_eq_u32 vcc, {r}, v7\ns_nop 1\nv_cndmask_b32 v8, v8, v{8+r}, vcc")
        A(f"""v_cvt_pk_bf16_f32 v8, v8, v8
        v_and_b32 v8, 0xffff0000, v8
        v_mul_f32 v9, {f2u(-1.4426950408889634):#x}, v8
        v_exp_f32 v9, v9
        s_nop 0
        v_add_f32 v9, 1.0, v9
        v_rcp_f32 v9, v9
        s_nop 0
        v_cvt_pk_bf16_f32 v9, v9, v9
        v_and_b32 v9, 0xffff0000, v9
        s_nop 1
        v_mov_b32_dpp v10, v9 quad_perm:[0,0,0,0] {DPPF}
        v_mov_b32_dpp v11, v9 quad_perm:[2,2,2,2] {DPPF}
        s_nop 0
        v_mul_f32_dpp v10, v8, v10 quad_perm:[1,1,1,1] {DPPF}
        v_mul_f32_dpp v11, v8, v11 quad_perm:[3,3,3,3] {DPPF}
        v_cvt_pk_bf16_f32 v10, v10, v10
        v_cvt_pk_bf16_f32 v11, v11, v11
        v_cmp_gt_u32 vcc, 32, v0
        s_nop 1
        v_cndmask_b32 v11, 0, v11, vcc""")
        for r in range(4):
            A(f"v_and_b32 v{12+r}, v10, v{100+r}\nv_and_b32 v{16+r}, v11, v{100+r}")
        A("s_waitcnt vmcnt(0)")
        for c in range(5):
            A(f"v_mfma_f32_16x16x32_bf16 v[{80+4*c}:{83+4*c}], v[{40+4*c}:{43+4*c}], v[12:15], 0")
        for c in range(5):
            A(f"v_mfma_f32_16x16x32_bf16 v[{80+4*c}:{83+4*c}], v[{60+4*c}:{63+4*c}], v[16:19], v[{80+4*c}:{83+4*c}]")
        A("v_bfe_u32 v4, v0, 3, 1")
        if s.order: A("s_and_b32 s42, s4, 1\nv_xor_b32 v4, s42, v4")
        A(f"""v_mul_u32_u24 v4, 2560, v4
        v_lshrrev_b32 v5, 5, v0
        v_lshl_add_u32 v4, v5, 8, v4
        v_and_b32 v5, 7, v0
        v_lshl_add_u32 v4, v5, 4, v4
        v_bfe_u32 v5, v0, 4, 1
        v_lshl_add_u32 v4, v5, 3, v4
        v_add_u32 v4, {YL}, v4""")
        for c in range(5):
            d=80+4*c
            A(f"ds_write2_b32 v4, v{d}, v{d+2} offset0:0 offset1:1")
            A(f"ds_write2_b32 v4, v{d+1}, v{d+3} offset0:32 offset1:33")
            if c<4: A("v_add_u32 v4, 512, v4")
        A(f"""v_mov_b32 v2, 1
        s_waitcnt lgkmcnt(0)
        ds_write_b32 v1, v2 offset:{F_Y}
        s_endpgm""")

    def stage1(s):
        A=s.A
        A("L_stage1:")
        s.srd(40,16,2560)
        A("""v_bfe_u32 v2, v0, 3, 1
        v_mul_u32_u24 v2, 1280, v2
        v_lshrrev_b32 v116, 4, v0
        v_and_b32 v117, 7, v0
        v_lshl_add_u32 v3, v116, 3, v117
        v_mul_u32_u24 v3, 40, v3
        v_add_u32 v3, v3, v2
        buffer_load_dwordx4 v[4:7], v3, s[40:43], 0 offen
        buffer_load_dwordx4 v[8:11], v3, s[40:43], 0 offen offset:16
        buffer_load_dwordx2 v[12:13], v3, s[40:43], 0 offen offset:32
        v_lshl_add_u32 v2, v116, 2, v2
        s_mul_i32 s44, s5, 160""")
        for Gi in range(10):
            A(f"buffer_load_dword v{14+Gi}, v2, s[40:43], s44 offen offset:{16*Gi}")
        A(f"""s_sub_u32 s45, s3, 4
        s_cmp_eq_u32 s45, 3
        s_cselect_b32 s8, s28, s30
        s_cselect_b32 s9, s29, s31
        s_mul_i32 s46, s4, 96
        s_mul_i32 s47, s4, 384
        s_lshl_b32 s48, s45, 7
        s_add_u32 s47, s47, s48
        s_cmp_lt_u32 s45, 3
        s_cselect_b32 s8, s22, s8
        s_cselect_b32 s9, s23, s9
        s_cselect_b32 s10, 7864320, 1966080
        s_mov_b32 s11, 0x20000
        s_cselect_b32 s46, s47, s46
        s_cselect_b32 s47, 12288, 3072
        s_cselect_b32 s48, 8, 6
        v_lshrrev_b32 v118, 3, v0
        v_mul_lo_u32 v118, v118, s47
        v_lshl_add_u32 v118, v117, 4, v118
        v_cmp_le_u32 vcc, s48, v117
        v_mov_b32 v119, 0x80000000
        s_mul_i32 s48, s5, 80
        s_mul_i32 s48, s48, s47
        v_cndmask_b32 v118, v118, v119, vcc
        s_add_u32 s46, s46, s48
        s_lshl_b32 s47, s47, 3""".replace("s_cselect_b32 s10, 7864320, 1966080","s_mov_b32 s10, 1966080\ns_cselect_b32 s10, 7864320, s10").replace("s_cselect_b32 s47, 12288, 3072","s_movk_i32 s47, 3072\ns_cselect_b32 s47, 12288, s47"))
        for Gi in range(10):
            A(f"buffer_load_dwordx4 v[{24+4*Gi}:{27+4*Gi}], v118, s[8:11], s46 offen nt")
            if Gi<9: A("s_add_u32 s46, s46, s47")
        A("s_barrier")
        s.masks(92,2,3)
        A("v_mov_b32 v2, 0x0c0c0c0c\ns_mov_b32 s48, 0x01000100\ns_mov_b32 s49, 0x03020302")
        for r in range(4):
            A(f"v_bfi_b32 v{84+r}, v{92+r}, s48, v2\nv_bfi_b32 v{88+r}, v{92+r}, s49, v2")
        A("s_waitcnt vmcnt(20)")
        for i in range(10):
            A(f"v_lshlrev_b32 v{64+2*i}, 16, v{4+i}\nv_and_b32 v{65+2*i}, 0xffff0000, v{4+i}")
        for i in range(10): A(f"v_add_f32 v{4+i}, v{64+2*i}, v{65+2*i}")
        for i in range(5): A(f"v_add_f32 v{4+i}, v{4+i}, v{9+i}")
        A("v_add_f32 v4, v4, v5\nv_add_f32 v6, v6, v7\nv_add_f32 v4, v4, v8\nv_add_f32 v4, v4, v6")
        def red32(v,t):
            for c in ("quad_perm:[1,0,3,2]","quad_perm:[2,3,0,1]","row_half_mirror"):
                A(f"s_nop 1\nv_add_f32_dpp v{v}, v{v}, v{v} {c} {DPPF}")
            s.swapred('v_add_f32',v,t,16)
            s.swapred('v_add_f32',v,t,32)
        red32(4,5)
        A(f"v_mul_f32 v4, {f2u(1/640):#x}, v4")
        for i in range(20): A(f"v_sub_f32 v{64+i}, v{64+i}, v4")
        for i in range(4): A(f"v_mul_f32 v{6+i}, v{64+i}, v{64+i}")
        for i in range(4,20): A(f"v_fmac_f32 v{6+i%4}, v{64+i}, v{64+i}")
        A("v_add_f32 v6, v6, v7\nv_add_f32 v8, v8, v9\nv_add_f32 v6, v6, v8")
        red32(6,5)
        A(f"""v_mul_f32 v6, {f2u(1/640):#x}, v6
        v_cvt_pk_bf16_f32 v4, v4, v6
        v_and_b32 v6, 0xffff0000, v4
        v_lshlrev_b32 v4, 16, v4
        v_add_f32 v6, {f2u(1e-5):#x}, v6
        v_cvt_pk_bf16_f32 v6, v6, v6
        v_and_b32 v6, 0xffff0000, v6
        v_sqrt_f32 v6, v6
        s_nop 0
        v_cvt_pk_bf16_f32 v6, v6, v6
        v_and_b32 v6, 0xffff0000, v6
        v_rcp_f32 v6, v6
        s_waitcnt vmcnt(10) lgkmcnt(0)
        s_add_u32 s6, s6, 1""")
        for i in range(10):
            A(f"v_lshlrev_b32 v{64+2*i}, 16, v{14+i}\nv_and_b32 v{65+2*i}, 0xffff0000, v{14+i}")
        for i in range(20): A(f"v_sub_f32 v{64+i}, v{64+i}, v4")
        for i in range(10): A(f"v_cvt_pk_bf16_f32 v{14+i}, v{64+2*i}, v{65+2*i}")
        for i in range(10):
            A(f"v_lshlrev_b32 v{64+2*i}, 16, v{14+i}\nv_and_b32 v{65+2*i}, 0xffff0000, v{14+i}")
        for i in range(20): A(f"v_mul_f32 v{64+i}, v{64+i}, v6")
        for i in range(10): A(f"v_cvt_pk_bf16_f32 v{14+i}, v{64+2*i}, v{65+2*i}")
        for Gi in range(10):
            b=92+8*(Gi&1)
            for r in range(8):
                A(f"v_perm_b32 v{b+r}, v{14+Gi}, v{14+Gi}, v{84+r}")
            if Gi>0:
                pb=92+8*((Gi-1)&1); w=24+4*(Gi-1)
                A(f"s_waitcnt vmcnt({10-Gi})")
                A(f"v_mfma_f32_16x16x32_bf16 v[108:111], v[{w}:{w+3}], v[{pb}:{pb+3}], {'0' if Gi==1 else 'v[108:111]'}")
                A(f"v_mfma_f32_16x16x32_bf16 v[112:115], v[{w}:{w+3}], v[{pb+4}:{pb+7}], {'0' if Gi==1 else 'v[112:115]'}")
        A("s_waitcnt vmcnt(0)")
        A("v_mfma_f32_16x16x32_bf16 v[108:111], v[60:63], v[100:103], v[108:111]")
        A("v_mfma_f32_16x16x32_bf16 v[112:115], v[60:63], v[104:107], v[112:115]")
        A(f"""v_bfe_u32 v2, v0, 3, 1
        v_mul_u32_u24 v2, 6144, v2
        v_lshl_add_u32 v3, v116, 3, v117
        v_lshl_add_u32 v2, v3, 4, v2
        v_lshlrev_b32 v3, 4, v0
        s_mul_i32 s46, s4, 12288
        s_mul_i32 s47, s5, 768
        s_add_u32 s46, s46, s47
        s_lshl_b32 s47, s45, 8
        s_add_u32 s46, s46, s47
        s_add_u32 s46, s46, {QG}
        s_lshl_b32 s47, s4, 3
        s_add_u32 s47, s47, s5
        s_lshl_b32 s47, s47, 1
        s_add_u32 s47, s47, s45
        s_lshl_b32 s47, s47, 9
        s_add_u32 s47, s47, {GG-3*512}
        s_cmp_lt_u32 s45, 3
        s_cselect_b32 s46, s46, s47
        s_cselect_b64 vcc, -1, 0
        v_cndmask_b32 v2, v3, v2, vcc
        v_mov_b32 v3, 0xff""")
        for r in range(4):
            A(f"v_permlane32_swap_b32 v{112+r}, v{4+r}")
        for r in range(4):
            A(f"v_add_f32 v{108+r}, v{108+r}, v{4+r}")
        for r in range(4):
            A(f"v_bfi_b32 v{108+r}, v3, s6, v{108+r}")
        A("""s_mov_b32 exec_hi, 0
        buffer_store_dwordx4 v[108:111], v2, s[12:15], s46 offen sc1
        s_mov_b32 exec_hi, -1""")
        if s.TS:
            A("s_cmp_eq_u32 s3, 4\ns_cbranch_scc0 L_s1_ns")
            s.stamp(6)
            A("L_s1_ns:")
        A("s_branch L_hold")

    def holder(s):
        A=s.A
        A("L_hold_bar:\ns_waitcnt lgkmcnt(0)\ns_barrier\ns_add_u32 s6, s6, 1")
        A("L_hold:")
        s.srd(8,24,7864320)
        A("s_sub_u32 s40, s3, 4")
        s.masks(4,2,3)
        A("""v_lshrrev_b32 v8, 4, v0
        v_bfe_u32 v9, v0, 3, 1
        v_sub_u32 v9, v8, v9
        v_mov_b32 v10, 0x3f803f80""")
        for sidx in range(2):
            A(f"v_cmp_eq_u32 vcc, {2*sidx}, v9\ns_nop 1\nv_cndmask_b32 v11, 0, v10, vcc")
            for r in range(4):
                A(f"v_and_b32 v{20+4*sidx+r}, v11, v{4+r}")
        A(f"""v_and_b32 v3, 3, v0
        v_lshlrev_b32 v3, 2, v3
        v_bfe_u32 v9, v0, 2, 2
        v_add_u32 v3, v3, v9
        v_mul_u32_u24 v3, 2560, v3
        v_lshl_add_u32 v3, v8, 4, v3
        s_mul_i32 s41, s4, {192*1280}
        s_lshl_b32 s42, s40, 7
        s_add_u32 s41, s41, s42
        s_mov_b32 s50, 0""")
        F=lambda tile,B: 32+4*(B*4+tile)
        for B in range(6):
            for t in range(2):
                s.poll(F_LAND, s.pace0+s.pace*(2*B+t), sleep=8, cache='s50')
                for hh in range(2):
                    f=F(2*hh+t,B)
                    A(f"buffer_load_dwordx4 v[{f}:{f+3}], v3, s[8:11], s41 offen offset:{1280*t+64*hh} nt")
            A(f"s_add_u32 s41, s41, {32*1280}\ns_waitcnt vmcnt(0)")
            for hh in range(2):
                f0=F(2*hh,B); f1=F(2*hh+1,B)
                A(f"v_mfma_f32_16x16x32_bf16 v[4:7], v[{f0}:{f0+3}], v[20:23], 0")
                A(f"v_mfma_f32_16x16x32_bf16 v[8:11], v[{f1}:{f1+3}], v[20:23], 0")
                A(f"v_mfma_f32_16x16x32_bf16 v[12:15], v[{f0}:{f0+3}], v[24:27], 0")
                A(f"v_mfma_f32_16x16x32_bf16 v[16:19], v[{f1}:{f1+3}], v[24:27], 0")
                A("s_nop 7")
                for i in range(4): A(f"v_cvt_pk_bf16_f32 v{f0+i}, v{4+2*i}, v{5+2*i}")
                for i in range(4): A(f"v_cvt_pk_bf16_f32 v{f1+i}, v{12+2*i}, v{13+2*i}")
        s.poll(F_Y, 1, sleep=8)
        A(f"""v_and_b32 v3, 3, v0
        v_mul_u32_u24 v3, 384, v3
        v_lshrrev_b32 v2, 4, v0
        v_lshl_add_u32 v3, v2, 4, v3
        v_and_b32 v0, 15, v0
        v_lshlrev_b32 v0, 4, v0
        s_mov_b32 s41, 0
        s_lshl_b32 s42, s40, 8
        s_lshl_b32 s43, s4, 3
        s_add_u32 s43, s43, s5
        s_mul_i32 s43, s43, 2560
        s_add_u32 s43, s43, s42
        s_add_u32 s43, s43, {YG}
        s_add_u32 s42, s42, {YL}
        s_mov_b32 s44, 62
        s_mov_b32 s45, 2""")
        A("L_h_seg:")
        A("v_add_u32 v2, s42, v0\nds_read_b128 v[20:23], v2")
        for t in range(4):
            for r in range(1,4): A(f"v_mov_b32 v{4+4*t+r}, 0")
        A("s_waitcnt lgkmcnt(0)")
        for t in range(4): A(f"v_mov_b32 v{4+4*t}, v{20+t}")
        s.poll(F_LAND,'s44',sleep=16,cache='s50')
        s.poll(F_O,'s45',sleep=1)
        for B in range(3):
            A(f"ds_read_b128 v[{20+4*B}:{23+4*B}], v3 offset:{OB+64*B}")
        for B in range(6):
            a=20+4*(B%3)
            A(f"s_waitcnt lgkmcnt({2 if B<4 else 5-B})")
            for t in range(4):
                f=F(t,B)
                A(f"v_mfma_f32_16x16x32_bf16 v[{4+4*t}:{7+4*t}], v[{a}:{a+3}], v[{f}:{f+3}], v[{4+4*t}:{7+4*t}]")
            if B<3: A(f"ds_read_b128 v[{a}:{a+3}], v3 offset:{OB+64*(B+3)}")
        A("v_mov_b32 v2, 0xff\ns_nop 3")
        for t in range(4):
            d=4+4*t
            A(f"v_add_f32 v{d}, v{d}, v{d+1}\nv_add_f32 v{d+2}, v{d+2}, v{d+3}")
        for t in range(4):
            d=4+4*t
            A(f"v_add_f32 v{20+t}, v{d}, v{d+2}")
        for t in range(4):
            A(f"v_bfi_b32 v{20+t}, v2, s6, v{20+t}")
        A(f"""s_mov_b64 exec, 0xffff
        buffer_store_dwordx4 v[20:23], v0, s[12:15], s43 offen sc1
        s_mov_b64 exec, -1
        v_add_u32 v3, 1536, v3
        s_add_u32 s42, s42, 2560
        s_add_u32 s43, s43, {256*2560}
        s_add_u32 s44, s44, 64
        s_add_u32 s45, s45, 2
        s_add_u32 s41, s41, 1
        s_cmp_lt_u32 s41, 2
        s_cbranch_scc1 L_h_seg""")
        if s.TS:
            A("s_cmp_eq_u32 s3, 4\ns_cbranch_scc0 L_h_ns")
            s.stamp(5)
            A("s_cmp_ge_u32 s2, 80\ns_cbranch_scc0 L_h_ns")
            s.stamp(1)
            A("L_h_ns:")
        A("s_endpgm")

    def final(s):
        A=s.A
        A("L_final:\ns_waitcnt lgkmcnt(0)\ns_barrier")
        A("s_cmp_ge_u32 s2, 80\ns_cbranch_scc1 L_end")
        A("s_add_u32 s6, s6, 1")
        s.srd(40,16,2560)
        s.srd(8,34,2560)
        A(f"""s_and_b32 s44, s2, 7
        s_mul_i32 s44, s44, 10
        s_lshr_b32 s45, s2, 3
        s_add_u32 s44, s44, s45
        s_lshl_b32 s44, s44, 1
        s_add_u32 s44, s44, s3
        s_sub_u32 s44, s44, 14
        s_cmp_ge_u32 s44, 80
        s_cselect_b32 s45, 1, 0
        s_cselect_b32 s46, 80, 0
        s_sub_u32 s44, s44, s46""")
        A(f"""s_lshr_b32 s46, s44, 3
        s_lshl_b32 s46, s46, 7
        s_and_b32 s47, s44, 7
        s_lshl_b32 s47, s47, 2
        s_add_u32 s46, s46, s47
        s_mul_i32 s47, s45, 1280
        s_add_u32 s46, s46, s47
        v_bfe_u32 v4, v0, 4, 1
        v_lshlrev_b32 v4, 6, v4
        v_lshrrev_b32 v5, 5, v0
        v_lshl_add_u32 v4, v5, 5, v4
        v_and_b32 v5, 1, v0
        v_lshl_add_u32 v4, v5, 1, v4
        v_add_u32 v4, s46, v4
        buffer_load_ushort v6, v4, s[40:43], 0 offen
        v_lshrrev_b32 v7, 4, v0
        v_lshlrev_b32 v7, 4, v7
        v_bfe_u32 v3, v0, 1, 3
        v_add_u32 v7, v7, v3
        v_mul_u32_u24 v7, 2560, v7
        v_lshl_add_u32 v7, v5, 4, v7
        s_lshl_b32 s44, s44, 5
        s_add_u32 s44, s44, {YG}
        s_mov_b32 s47, 0
        s_mov_b32 s48, 62
        s_mov_b32 s49, 2
        s_mov_b32 s50, 0""")
        for r in range(4): A(f"v_mov_b32 v{24+r}, 0")
        A("L_f_seg:")
        if s.order:
            A(f"s_xor_b32 s51, s45, s47\ns_mul_i32 s51, s51, {8*2560}\ns_add_u32 s51, s51, s44")
        else:
            raise NotImplementedError
        for j in range(1,4): A(f"s_add_u32 s{51+j}, s51, {j*64*2560}")
        for j in range(4): A(f"s_mov_b64 s[{56+2*j}:{57+2*j}], -1")
        s.poll(F_LAND,'s48',sleep=16,cache='s50')
        s.poll(F_O,'s49',sleep=2)
        A("L_f_poll:")
        for j in range(4):
            A(f"""s_mov_b64 exec, s[{56+2*j}:{57+2*j}]
            s_cbranch_execz L_f_sk{j}
            buffer_load_dwordx4 v[{8+4*j}:{11+4*j}], v7, s[12:15], s{51+j} offen sc1
            L_f_sk{j}:""")
        A("s_mov_b64 exec, -1\ns_waitcnt vmcnt(0)")
        for j in range(4):
            d=8+4*j
            A(f"""v_xor_b32 v{28+j}, s6, v{d}
            v_bitop3_b32 v{28+j}, v{28+j}, v{d+1}, s6 bitop3:0xf6
            v_bitop3_b32 v{28+j}, v{28+j}, v{d+2}, s6 bitop3:0xf6
            v_bitop3_b32 v{28+j}, v{28+j}, v{d+3}, s6 bitop3:0xf6""")
        A("s_nop 0")
        for j in range(4):
            A(f"v_or_b32_dpp v{28+j}, v{28+j}, v{28+j} quad_perm:[1,0,3,2] {DPPF}")
        for j in range(4):
            A(f"v_and_b32 v{28+j}, 0xff, v{28+j}")
        for j in range(4):
            A(f"v_cmp_ne_u32 s[{56+2*j}:{57+2*j}], 0, v{28+j}")
        A("""s_or_b64 s[64:65], s[56:57], s[58:59]
        s_or_b64 s[66:67], s[60:61], s[62:63]
        s_or_b64 s[64:65], s[64:65], s[66:67]
        s_cbranch_scc0 L_f_ok
        s_sleep 1
        s_sub_u32 s7, s7, 1
        s_cbranch_scc0 L_f_poll
        s_endpgm
        L_f_ok:""")
        for i in range(16): A(f"v_and_b32 v{8+i}, 0xffffff00, v{8+i}")
        for i in range(8): A(f"v_add_f32 v{8+i}, v{8+i}, v{16+i}")
        for i in range(4): A(f"v_add_f32 v{24+i}, v{24+i}, v{12+i}")
        for i in range(4): A(f"v_add_f32 v{24+i}, v{24+i}, v{8+i}")
        A(f"""s_add_u32 s44, s44, {256*2560}
        s_add_u32 s48, s48, 64
        s_add_u32 s49, s49, 2
        s_add_u32 s47, s47, 1
        s_cmp_lt_u32 s47, 2
        s_cbranch_scc1 L_f_seg
        v_permlane32_swap_b32 v24, v25
        v_permlane32_swap_b32 v26, v27
        v_add_f32 v24, v24, v25
        v_add_f32 v26, v26, v27
        v_lshlrev_b32 v6, 16, v6
        s_nop 0
        v_permlane16_swap_b32 v24, v26
        v_add_f32 v24, v24, v26""")
        for c in ("quad_perm:[2,3,0,1]","row_ror:4","row_ror:8"):
            A(f"s_nop 1\nv_add_f32_dpp v24, v24, v24 {c} {DPPF}")
        A("""v_add_f32 v24, v24, v6
        v_cvt_pk_bf16_f32 v24, v24, v24
        s_mov_b32 exec_lo, 0x00030003
        s_mov_b32 exec_hi, 0x00030003
        buffer_store_short v24, v4, s[8:11], 0 offen
        s_mov_b64 exec, 1
        s_cmp_eq_u32 s2, 0
        s_cbranch_scc0 L_f_noep
        s_cmp_eq_u32 s3, 14
        s_cbranch_scc0 L_f_noep
        v_mov_b32 v2, s6
        buffer_store_dword v2, v1, s[12:15], 0 offen
        L_f_noep:
        s_mov_b64 exec, -1""")
        if s.TS:
            A("s_cmp_eq_u32 s3, 14\ns_cbranch_scc0 L_end")
            s.stamp(1)
        A("L_end:")

    def build(s):
        s.prologue(); s.loader(); s.common2(); s.consumer(); s.aux(); s.stage1(); s.holder(); s.final()
        errs=hazard.check(s.L)
        for e in errs: print(e)
        if errs: raise SystemExit("hazards")
        return "\n".join(("    "+l if not l.endswith(':') else l) for l in s.L)

HEADER=open('parallel_sum__gqa_block_cached__glu_gated_glu__decode.s.ref').read().split('; Override launch')[0]
def full(body):
    return HEADER+f"; @launch grid=(256,1,1) block=(1024,1,1) lds={LDS_BYTES}\n"+wrap(NAME,body,128,128,sgpr=96)

if __name__=="__main__":
    if len(sys.argv)>1 and sys.argv[1]=='bench':
        cfgs=eval(sys.argv[2]); args=[]; files=[]
        for c in cfgs:
            nm="k_"+"_".join(f"{k}{v}" for k,v in c.items())
            body=G(**c).build()
            build(nm,NAME,wrap(NAME,body,128,128,sgpr=96),128,1024,sgpr=96)
            args+=[f"work/{nm}.co",NAME,"256","1024",str(LDS_BYTES)]; files.append(f"work/{nm}.co")
        open('last_args.txt','w').write(" ".join(args))
        import json; print(json.dumps(["work/bench","work/last_args.txt"]+files))
    else:
        kw=eval(sys.argv[2]) if len(sys.argv)>2 else {}
        out=sys.argv[1] if len(sys.argv)>1 else 'parallel_sum__gqa_block_cached__glu_gated_glu__decode.s'
        open(out,'w').write(full(G(**kw).build()))
        print("written",out)
```

```python
import sys, struct
from common import *
import hazard

NAME="parallel_sum__gqa_block_cached__glu_gated_glu__decode_kernel"
KVB=201326592; BST=100663296; HST=3145728
F_LAND=0; F_FREE=4; F_Q=12; F_O=16; F_Y=20; F_S1=24; F_MODE=28
QB=256; OB=1024; SC=4096; YL=8192; RING=16384; SLOT=12288; NSLOT=12
LDS_BYTES=RING+SLOT*NSLOT
MLG=4096; PG=20480; QG=32768; GG=425984; YG=688128; WSB=2097152; PG2=2031616
def f2u(x): return struct.unpack('<I',struct.pack('<f',x))[0]
SCALE=f2u(192**-0.5); LOG2E=f2u(1.4426950408889634)
DPPF="row_mask:0xf bank_mask:0xf"

class G:
    def __init__(s, N=21, TS=0, rot=1, order=1, pace0=12, pace=2, fin0=90, asleep=4, NT=None, tailn=0, noswz=0, nowo=0, csleep=1, nofree=0, prio=3, mon=0, NH=30, NL=16, tg=3, ta=3, tb=3, per=4, oth=0, mst='sc1', rph=2, fl=1, ls=1152, reps=1, da=1, db=0, ydef=0, nogl=0):
        s.reps=reps; s.da=da; s.db=db; s.ydef=ydef; s.nogl=nogl
        s.fl=fl; s.ls=ls
        s.oth=oth; s.mst=mst; s.rph=rph
        s.mon=mon; s.NH=NH; s.NL=NL; s.tg=tg; s.ta=ta; s.tb=tb; s.per=per
        s.noswz=noswz; s.nowo=nowo; s.csleep=csleep; s.nofree=nofree; s.prio=prio
        s.L=[]; s.N=N; s.TS=TS; s.rot=rot; s.order=order; s.uid=0; s.pace0=pace0; s.pace=pace; s.fin0=fin0; s.asleep=asleep
        s.NT=NT; s.tailn=tailn
    def A(s,x):
        for l in x.split('\n'):
            l=l.strip()
            if l: s.L.append(l)
    def lab(s,p):
        s.uid+=1; return f"L_{p}_{s.uid}"
    def stamp(s,slot,mode=1):
        if not s.TS: return
        if slot in (2,4,5,6) and mode!=s.TS: return
        s.A(f"""s_memrealtime s[90:91]
        s_add_u32 s92, s38, 0x20000000
        s_addc_u32 s93, s39, 0
        s_lshl_b32 s94, s2, 6
        s_add_u32 s92, s92, s94
        s_addc_u32 s93, s93, 0
        s_waitcnt lgkmcnt(0)
        v_mov_b32 v2, s90
        v_mov_b32 v3, s91
        global_store_dwordx2 v1, v[2:3], s[92:93] offset:{slot*8}""")
    def poll(s, off, need, sleep=1, cache=None, tmp='s46', vaddr='v1'):
        l=s.lab('pl'); d=s.lab('pd')
        if cache:
            s.A(f"s_cmp_ge_u32 {cache}, {need}\ns_cbranch_scc1 {d}")
            tmp=cache
        s.A(f"""{l}:
        ds_read_b32 v2, {vaddr} offset:{off}
        s_waitcnt lgkmcnt(0)
        v_readfirstlane_b32 {tmp}, v2
        s_cmp_ge_u32 {tmp}, {need}
        s_cbranch_scc1 {d}
        s_sleep {sleep}
        s_sub_u32 s7, s7, 1
        s_cbranch_scc0 {l}
        s_endpgm
        {d}:""")
    def masks(s, m0, t0, t1):
        s.A(f"""v_and_b32 v{t0}, 1, v0
        v_lshlrev_b32 v{t0}, 4, v{t0}
        v_mov_b32 v{t1}, 0xffff
        v_lshlrev_b32 v{t0}, v{t0}, v{t1}
        v_bfe_u32 v{t1}, v0, 1, 2""")
        for r in range(4):
            s.A(f"v_cmp_eq_u32 vcc, {r}, v{t1}\ns_nop 1\nv_cndmask_b32 v{m0+r}, 0, v{t0}, vcc")
    def rowred(s, op, v, t=None):
        for c in ("quad_perm:[1,0,3,2]","quad_perm:[2,3,0,1]","row_half_mirror","row_mirror"):
            s.A(f"s_nop 1\n{op}_dpp v{v}, v{v}, v{v} {c} {DPPF}")
    def swapred(s, op, v, t, which):
        s.A(f"""v_mov_b32 v{t}, v{v}
        s_nop 1
        v_permlane{which}_swap_b32 v{v}, v{t}
        {op} v{v}, v{v}, v{t}""")
    def srd(s, d, ptr, size):
        s.A(f"s_mov_b32 s{d}, s{ptr}\ns_mov_b32 s{d+1}, s{ptr+1}\ns_mov_b32 s{d+2}, {size}\ns_mov_b32 s{d+3}, 0x20000")

    def prologue(s):
        A=s.A
        if s.TS: A("s_memrealtime s[88:89]")
        A("""s_load_dwordx16 s[16:31], s[0:1], 0
        s_load_dwordx8 s[32:39], s[0:1], 64
        s_cmp_ge_u32 s2, 256
        s_cbranch_scc1 L_end
        v_lshrrev_b32 v1, 6, v0
        v_and_b32 v0, 63, v0
        v_readfirstlane_b32 s3, v1
        s_and_b32 s4, s2, 7
        s_lshr_b32 s5, s2, 3
        s_lshr_b32 s6, s5, 3
        s_lshl_b32 s4, s4, 2
        s_add_u32 s4, s4, s6
        s_and_b32 s5, s5, 7
        s_mov_b32 s7, 0x400000
        v_mov_b32 v1, 0
        s_cmp_eq_u32 s3, 0
        s_cbranch_scc0 L_notloader""")

    def loader(s):
        A=s.A; N=s.N
        A(f"s_setprio {s.prio}")
        A("""v_lshrrev_b32 v4, 3, v0
        v_and_b32 v5, 7, v0
        v_lshlrev_b32 v6, 7, v4
        v_lshlrev_b32 v9, 4, v0""")
        for k in range(6):
            A(f"""v_add_u32 v7, {8*k}, v4
            v_mul_u32_u24 v7, 43, v7
            v_lshrrev_b32 v7, 8, v7
            {'v_mov_b32 v7, v5' if s.noswz else 'v_xor_b32 v7, v7, v5'}
            v_lshl_add_u32 v{10+k}, v7, 4, v6""")
        A("s_mul_i32 s40, s4, %d"%HST)
        A("s_mov_b32 s41, 0")
        A(f"s_mov_b32 s42, {RING}")
        A("s_mov_b32 s43, 0")
        A("s_mov_b32 s50, 0\ns_mov_b32 s51, 0\ns_mov_b32 s52, 0\ns_mov_b32 s53, 0\ns_mov_b32 s54, 0")
        A("s_waitcnt lgkmcnt(0)")
        A(f"s_mov_b32 s10, {KVB}\ns_mov_b32 s11, 0x20000")
        s.stamp(0)
        if s.TS:
            A("v_mov_b32 v2, s88\nv_mov_b32 v3, s89\nglobal_store_dwordx2 v1, v[2:3], s[92:93]")
        A("L_ld_phase:")
        if s.TS==2:
            A("v_mov_b32 v30, v3")
            for ph,sl in enumerate((2,4,5,6)):
                A(f"s_cmp_eq_u32 s43, {ph}\ns_cbranch_scc0 L_ld_st{ph}")
                A("s_waitcnt lgkmcnt(0)\nv_mov_b32 v30, v3")
                s.stamp(sl,2)
                A(f"v_mov_b32 v3, v30\nL_ld_st{ph}:")
        A("s_lshr_b32 s44, s43, 1")
        if s.order: A("s_xor_b32 s44, s44, s4")
        A(f"""s_and_b32 s44, s44, 1
        s_mul_i32 s44, s44, {BST}
        s_add_u32 s44, s44, s40
        s_and_b32 s45, s43, 1
        s_cselect_b32 s8, s20, s18
        s_cselect_b32 s9, s21, s19
        s_cselect_b64 vcc, -1, 0""")
        for k in range(6):
            A(f"v_cndmask_b32 v{20+k}, v{10+k}, v9, vcc")
        A("s_mov_b32 s45, 0")
        A("L_ld_chunk:")
        A(f"""s_lshr_b32 s47, s41, 1
        s_sub_u32 s47, s47, {NSLOT//2-1 if not s.nofree else 1000}
        s_cbranch_scc1 L_ld_go
        s_waitcnt lgkmcnt(0)
        v_readfirstlane_b32 s50, v3
        v_readfirstlane_b32 s52, v5
        s_cmp_ge_u32 s50, s47
        s_cbranch_scc1 L_ld_go
        s_waitcnt vmcnt(0)
        s_mov_b32 s51, s41
        v_mov_b32 v2, s41
        ds_write_b32 v1, v2 offset:{F_LAND}""")
        s.poll(F_FREE, 's47', sleep=1, vaddr='v4')
        A("L_ld_go:")
        if s.rot:
            A("s_add_u32 s46, s45, s5\ns_and_b32 s46, s46, 7")
        else:
            A("s_mov_b32 s46, s5")
        A(f"""s_lshl_b32 s47, s45, 3
        s_add_u32 s46, s46, s47
        s_mul_i32 s46, s46, {SLOT}
        s_add_u32 s46, s46, s44""")
        def body(N, tag):
            pubk=(N-1)%12; pubd=(N-1-pubk)//12
            for k in range(12):
                if k%4==0:
                    A(f"s_add_u32 m0, s42, {k*1024}\ns_add_u32 s47, s46, {k*1024}")
                A(f"s_waitcnt vmcnt({N-1})")
                if k==pubk:
                    A(f"""s_sub_u32 s48, s41, {pubd}
                    s_max_i32 s51, s51, s48
                    v_mov_b32 v2, s51
                    ds_write_b32 v1, v2 offset:{F_LAND}""")
                A(f"buffer_load_dwordx4 v{20+k%6}, s[8:11], s47 offen offset:{(k%4)*1024} nt lds")
                if k==6 and tag=='':
                    A("""s_cmp_eq_u32 s41, 1
                    s_cbranch_scc0 L_ld_nobar
                    s_barrier
                    L_ld_nobar:""")
                if k==9:
                    A(f"""s_and_b32 s48, s41, 1
                    s_xor_b32 s48, s48, 1
                    s_lshl_b32 s48, s48, 2
                    v_mov_b32 v4, s48
                    ds_read_b32 v3, v4 offset:{F_FREE}""")
                    if s.mon: A(f"ds_read_b32 v5, v1 offset:{F_MODE}")
        assert N>=13
        if s.tailn:
            A(f"s_cmp_ge_u32 s41, {128-s.tailn}\ns_cbranch_scc1 L_ld_tail")
        if s.mon:
            A("s_cmp_eq_u32 s52, 1\ns_cbranch_scc1 L_ld_hi\ns_cmp_eq_u32 s52, 2\ns_cbranch_scc1 L_ld_lo")
        body(N,'')
        if s.tailn:
            A("s_branch L_ld_next\nL_ld_tail:")
            body(s.NT,'t')
        if s.mon:
            A("s_branch L_ld_next\nL_ld_hi:")
            if s.TS: A("s_add_u32 s53, s53, 1")
            body(s.NH,'h')
            A("s_branch L_ld_next\nL_ld_lo:")
            if s.TS: A("s_add_u32 s54, s54, 1")
            body(s.NL,'l')
        A("L_ld_next:")
        A(f"""s_add_u32 s42, s42, {SLOT}
        s_cmp_ge_u32 s42, {RING+SLOT*NSLOT}
        s_cselect_b32 s42, {RING}, s42
        s_add_u32 s41, s41, 1
        s_add_u32 s45, s45, 1
        s_cmp_lt_u32 s45, 32
        s_cbranch_scc1 L_ld_chunk
        s_add_u32 s43, s43, 1
        s_cmp_lt_u32 s43, 4
        s_cbranch_scc1 L_ld_phase""")
        NE = max(s.NT if s.tailn else N, s.NH if s.mon else N)
        for x in range((NE-1)//12,-1,-1):
            A(f"s_max_i32 s51, s51, {128-x}\nv_mov_b32 v2, s51\ns_waitcnt vmcnt({12*x})\nds_write_b32 v1, v2 offset:{F_LAND}")
        s.stamp(3)
        if s.TS:
            A("s_getreg_b32 s90, hwreg(HW_REG_XCC_ID)\ns_lshl_b32 s53, s53, 8\ns_lshl_b32 s54, s54, 16\ns_and_b32 s90, s90, 15\ns_or_b32 s90, s90, s53\ns_or_b32 s90, s90, s54\nv_mov_b32 v2, s90\nv_mov_b32 v3, 0\nglobal_store_dwordx2 v1, v[2:3], s[92:93] offset:56")
        A("s_endpgm")

    def common2(s):
        A=s.A
        A("L_notloader:")
        A("s_waitcnt lgkmcnt(0)")
        A("s_load_dword s6, s[38:39], 0")
        s.srd(12,38,WSB)
        A("""s_cmp_ge_u32 s3, 14
        s_cbranch_scc1 L_final
        s_cmp_ge_u32 s3, 9
        s_cbranch_scc1 L_hold_bar
        s_cmp_ge_u32 s3, 4
        s_cbranch_scc1 L_stage1
        s_cmp_eq_u32 s3, 3
        s_cbranch_scc1 L_aux""")

    def consumer(s):
        A=s.A
        A("s_sub_u32 s40, s3, 1")
        A("v_lshlrev_b32 v2, 2, v0\nds_write_b32 v2, v1")
        A("""v_and_b32 v8, 15, v0
        v_lshrrev_b32 v9, 4, v0
        v_lshrrev_b32 v10, 1, v8
        v_xor_b32 v10, v10, v9
        v_lshlrev_b32 v10, 4, v10
        v_mad_u32_u24 v4, v8, v11, v10""".replace("v_mad_u32_u24 v4, v8, v11, v10","v_mul_u32_u24 v4, 384, v8\nv_add_u32 v4, v4, v10"))
        A("""v_mul_u32_u24 v5, 768, v9
        v_lshl_add_u32 v5, v8, 4, v5""")
        s.masks(100,10,11)
        A("s_lshl_b32 s47, s40, 2\nv_mov_b32 v3, s47")
        A("s_waitcnt lgkmcnt(0)\ns_barrier")
        A("s_add_u32 s6, s6, 1")
        A(f"""s_mov_b32 s41, 0
        s_mul_i32 s42, s40, {SLOT}
        s_add_u32 s42, s42, {RING}
        s_add_u32 s43, s40, 1
        s_mov_b32 s44, 0
        s_mov_b32 s50, 0""")
        A("L_c_seg:")
        A("s_add_u32 s47, s41, 1")
        s.poll(F_Q,'s47',sleep=2)
        A(f"""s_mul_i32 s47, s41, 384
        v_lshrrev_b32 v9, 4, v0
        v_lshl_add_u32 v2, v9, 4, s47""")
        for j in range(6):
            A(f"ds_read_b128 v[{8+4*j}:{11+4*j}], v2 offset:{QB+64*j}")
        A(f"""s_lshl_b32 s47, s40, 11
        s_add_u32 s47, s47, {SC}
        v_and_b32 v6, 7, v0
        v_lshlrev_b32 v6, 4, v6
        v_bfe_u32 v7, v0, 3, 2
        v_lshl_add_u32 v6, v7, 2, v6
        v_add_u32 v6, s47, v6
        v_lshrrev_b32 v7, 3, v0
        v_lshl_add_u32 v7, v7, 4, s47
        v_mov_b32 v124, 0xff800000
        s_mov_b32 s45, 0""")
        def adv():
            A(f"""s_add_u32 s42, s42, {2*SLOT}
            s_sub_u32 s47, s42, {SLOT*NSLOT}
            s_cmp_ge_u32 s42, {RING+SLOT*NSLOT}
            s_cselect_b32 s42, s47, s42
            s_add_u32 s43, s43, 2
            s_add_u32 s45, s45, 1""")
        A("L_c_k:")
        s.poll(F_LAND,'s43',sleep=s.csleep,cache='s50')
        A("v_add_u32 v125, s42, v4\nv_xor_b32 v126, 64, v125")
        k=0
        for j in range(6):
            for t in range(2):
                A(f"ds_read_b128 v[{32+4*k}:{35+4*k}], v{126 if j&1 else 125} offset:{t*6144+(j>>1)*128}")
                k+=1
        A("s_add_u32 s44, s44, 1\nv_mov_b32 v2, s44")
        k=0
        for j in range(6):
            for t in range(2):
                d=80+4*t
                A(f"s_waitcnt lgkmcnt({11-k})")
                A(f"v_mfma_f32_16x16x32_bf16 v[{d}:{d+3}], v[{8+4*j}:{11+4*j}], v[{32+4*k}:{35+4*k}], {'0' if j==0 else f'v[{d}:{d+3}]'}")
                k+=1
        A(f"ds_write_b32 v3, v2 offset:{F_FREE}")
        adv()
        A(f"""s_nop 0
        v_mov_b32_dpp v80, v84 quad_perm:[0,1,2,3] row_mask:0xa bank_mask:0xf
        v_cvt_pk_bf16_f32 v81, v80, v80
        v_and_b32 v81, 0xffff0000, v81
        v_mul_f32 v81, {SCALE:#x}, v81
        v_cvt_pk_bf16_f32 v81, v81, v81
        v_and_b32 v81, 0xffff0000, v81
        v_max_f32 v124, v124, v81
        ds_write_b32 v6, v81
        v_add_u32 v6, 128, v6
        s_cmp_lt_u32 s45, 16
        s_cbranch_scc1 L_c_k""")
        A(f"""s_lshl_b32 s47, s40, 11
        s_add_u32 s47, s47, {SC}
        v_lshl_add_u32 v6, v0, 4, s47
        ds_read_b128 v[32:35], v6
        ds_read_b128 v[36:39], v6 offset:1024""")
        s.rowred('v_max_f32',124)
        s.swapred('v_max_f32',124,2,16)
        A(f"""s_mov_b32 s47, {LOG2E:#x}
        v_mul_f32 v124, s47, v124
        s_waitcnt lgkmcnt(0)""")
        for i in range(8): A(f"v_fma_f32 v{32+i}, v{32+i}, s47, -v124")
        for i in range(8): A(f"v_exp_f32 v{32+i}, v{32+i}")
        A("""v_add_f32 v40, v32, v33
        v_add_f32 v41, v34, v35
        v_add_f32 v42, v36, v37
        v_add_f32 v43, v38, v39
        v_add_f32 v40, v40, v41
        v_add_f32 v42, v42, v43
        v_add_f32 v45, v40, v42""")
        for i in range(8): A(f"v_cvt_pk_bf16_f32 v{32+i}, v{32+i}, v{32+i}")
        A("ds_write_b128 v6, v[32:35]\nds_write_b128 v6, v[36:39] offset:1024")
        s.rowred('v_add_f32',45)
        s.swapred('v_add_f32',45,2,16)
        s.swapred('v_add_f32',45,2,32)
        A(f"""v_mov_b32 v44, v124
        v_mov_b32 v46, s6
        v_mov_b32 v47, s6
        s_lshl_b32 s48, s41, 5
        s_add_u32 s48, s48, s4
        s_lshl_b32 s48, s48, 8
        s_add_u32 s48, s48, {MLG}
        s_lshl_b32 s47, s5, 1
        s_add_u32 s47, s47, s40
        s_lshl_b32 s47, s47, 4
        s_add_u32 s47, s47, s48
        s_mov_b64 exec, 1
        buffer_store_dwordx4 v[44:47], v1, s[12:15], s47 offen sc1
        s_mov_b64 exec, -1""")
        for i in range(12): A(f"v_mov_b32 v{88+i}, 0")
        A("s_mov_b32 s45, 0")
        A("L_c_v:")
        A("s_cmp_eq_u32 s45, 8\ns_cbranch_scc0 L_c_noml")
        A("""v_and_b32 v125, 15, v0
        v_lshlrev_b32 v125, 4, v125
        L_c_ml:
        buffer_load_dwordx4 v[32:35], v125, s[12:15], s48 offen sc1
        s_waitcnt vmcnt(0)
        v_cmp_ne_u32 vcc, s6, v34
        v_cmp_ne_u32 s[52:53], s6, v35
        s_or_b64 vcc, vcc, s[52:53]
        s_cbranch_scc0 L_c_mlok
        s_sleep 4
        s_sub_u32 s7, s7, 1
        s_cbranch_scc0 L_c_ml
        s_endpgm
        L_c_mlok:
        v_mov_b32 v36, v32""")
        s.rowred('v_max_f32',36)
        A("""v_sub_f32 v32, v32, v36
        v_sub_f32 v37, v124, v36
        v_exp_f32 v32, v32
        v_exp_f32 v37, v37
        v_mul_f32 v33, v33, v32""")
        s.rowred('v_add_f32',33)
        A("""v_rcp_f32 v33, v33
        s_nop 0
        v_mul_f32 v127, v37, v33
        L_c_noml:""")
        s.poll(F_LAND,'s43',sleep=s.csleep,cache='s50')
        A("v_add_u32 v125, s42, v5\nds_read_b128 v[120:123], v7")
        k=0
        for t in range(4):
            for ty in range(3):
                A(f"ds_read_b128 v[{32+4*k}:{35+4*k}], v125 offset:{t*3072+ty*256}")
                k+=1
        A("s_add_u32 s44, s44, 1\nv_mov_b32 v2, s44\nv_add_u32 v7, 128, v7\ns_waitcnt lgkmcnt(12)")
        for t in range(4):
            for r in range(4):
                A(f"v_and_b32 v{104+4*t+r}, v{120+t}, v{100+r}")
        k=0
        for t in range(4):
            for ty in range(3):
                d=88+4*ty
                A(f"s_waitcnt lgkmcnt({11-k})")
                A(f"v_mfma_f32_16x16x32_bf16 v[{d}:{d+3}], v[{32+4*k}:{35+4*k}], v[{104+4*t}:{107+4*t}], v[{d}:{d+3}]")
                k+=1
        A(f"ds_write_b32 v3, v2 offset:{F_FREE}")
        adv()
        A("s_cmp_lt_u32 s45, 16\ns_cbranch_scc1 L_c_v")
        A(f"""s_mul_i32 s47, s41, 1536
        s_mul_i32 s48, s40, 768
        s_add_u32 s47, s47, s48
        s_add_u32 s47, s47, {OB}
        v_bfe_u32 v32, v0, 3, 1
        v_lshrrev_b32 v33, 4, v0
        v_and_b32 v34, 7, v0
        v_lshlrev_b32 v125, 9, v32
        v_lshl_add_u32 v125, v33, 6, v125
        v_lshl_add_u32 v125, v34, 3, v125
        v_add_u32 v125, s47, v125
        v_lshlrev_b32 v32, 9, v32
        v_sub_u32 v126, v125, v32""")
        for r in range(4):
            A(f"v_mov_b32_dpp v{88+r}, v{96+r} quad_perm:[0,1,2,3] row_mask:0xf bank_mask:0xc")
        for r in range(8):
            A(f"v_mul_f32 v{88+r}, v127, v{88+r}")
        A(f"""v_cvt_pk_bf16_f32 v32, v88, v89
        v_cvt_pk_bf16_f32 v33, v90, v91
        v_cvt_pk_bf16_f32 v34, v92, v93
        v_cvt_pk_bf16_f32 v35, v94, v95
        ds_write_b64 v125, v[32:33]
        s_mov_b32 exec_lo, 0x00ff00ff
        s_mov_b32 exec_hi, 0xff00ff00
        ds_write_b64 v126, v[34:35] offset:256
        s_mov_b64 exec, 1
        v_mov_b32 v2, 1
        s_waitcnt lgkmcnt(0)
        ds_add_u32 v1, v2 offset:{F_O}
        s_mov_b64 exec, -1
        s_add_u32 s41, s41, 1
        s_cmp_lt_u32 s41, 2
        s_cbranch_scc1 L_c_seg""")
        s.stamp(4)
        A("s_endpgm")

    def gather8(s, voff, sbase, stride, d0, vt, vtag, sleep=2):
        A=s.A
        l=s.lab('g8'); ok=s.lab('g8ok')
        A(f"{l}:")
        for j in range(8):
            if j*stride<4096:
                A(f"buffer_load_dwordx4 v[{d0+4*j}:{d0+4*j+3}], v{voff}, s[12:15], {sbase} offen offset:{j*stride} sc1")
            else:
                if (j-1)*stride<4096 : A(f"s_add_u32 s49, {sbase}, {j*stride}"); j0=j
                A(f"buffer_load_dwordx4 v[{d0+4*j}:{d0+4*j+3}], v{voff}, s[12:15], s49 offen offset:{(j-j0)*stride} sc1")
        A(f"v_mov_b32 v{vt}, 0")
        for j in range(8):
            A(f"s_waitcnt vmcnt({7-j})")
            for r in range(4):
                A(f"v_bitop3_b32 v{vt}, v{vt}, v{d0+4*j+r}, s6 bitop3:0xf6")
        A(f"""v_and_b32 v{vt}, 0xff, v{vt}
        v_cmp_ne_u32 vcc, 0, v{vt}
        s_cbranch_vccz {ok}
        s_sleep {sleep}
        s_sub_u32 s7, s7, 1
        s_cbranch_scc0 {l}
        s_endpgm
        {ok}:""")
        for i in range(32):
            A(f"v_and_b32 v{d0+i}, 0xffffff00, v{d0+i}")
        for st in (16,8,4):
            for i in range(st):
                A(f"v_add_f32 v{d0+i}, v{d0+i}, v{d0+i+st}")

    def aux(s):
        A=s.A
        A("L_aux:")
        s.srd(8,32,1966080)
        A("""v_min_u32 v4, 47, v0
        v_lshlrev_b32 v5, 4, v4
        v_lshrrev_b32 v6, 3, v4
        v_lshlrev_b32 v6, 6, v6
        v_and_b32 v7, 7, v4
        v_lshl_add_u32 v6, v7, 1, v6""")
        s.masks(100,10,11)
        A("s_waitcnt lgkmcnt(0)\ns_barrier\ns_add_u32 s6, s6, 1\ns_mov_b32 s41, 0")
        s.poll(F_S1,5,sleep=2)
        A("L_a_q:")
        if s.order: A("s_xor_b32 s42, s41, s4\ns_and_b32 s42, s42, 1")
        else: A("s_mov_b32 s42, s41")
        A(f"""s_lshl_b32 s43, s4, 1
        s_add_u32 s42, s42, s43
        s_mul_i32 s42, s42, 6144
        s_add_u32 s42, s42, {QG}""")
        s.gather8(5,'s42',768,8,3,None,sleep=s.asleep)
        A(f"""v_cvt_pk_bf16_f32 v8, v8, v9
        v_cvt_pk_bf16_f32 v10, v10, v11
        ds_write_b16 v6, v8 offset:{QB}
        ds_write_b16_d16_hi v6, v8 offset:{QB+16}
        ds_write_b16 v6, v10 offset:{QB+32}
        ds_write_b16_d16_hi v6, v10 offset:{QB+48}
        s_add_u32 s41, s41, 1
        v_mov_b32 v2, s41
        v_add_u32 v6, 384, v6
        s_waitcnt lgkmcnt(0)
        ds_write_b32 v1, v2 offset:{F_Q}""")
        if s.TS==1:
            A("s_cmp_eq_u32 s41, 1\ns_cbranch_scc0 L_a_ns")
            s.stamp(2)
            A("L_a_ns:")
        A("s_cmp_lt_u32 s41, 2\ns_cbranch_scc1 L_a_q")
        A(f"""v_and_b32 v4, 15, v0
        v_lshrrev_b32 v9, 4, v0
        v_mul_u32_u24 v5, 1280, v9
        v_lshl_add_u32 v5, v4, 4, v5
        v_lshlrev_b32 v6, 30, v9
        v_and_b32 v6, 0x80000000, v6
        v_or_b32 v6, v6, v5
        s_lshl_b32 s42, s4, 3
        s_add_u32 s42, s42, s5
        s_mul_i32 s43, s42, {6*1280}
        s_add_u32 s44, s43, {4*1280}""")
        for c in range(5):
            A(f"buffer_load_dwordx4 v[{40+4*c}:{43+4*c}], v5, s[8:11], s43 offen offset:{256*c} nt")
        for c in range(5):
            A(f"buffer_load_dwordx4 v[{60+4*c}:{63+4*c}], v6, s[8:11], s44 offen offset:{256*c} nt")
        A(f"""v_bfe_u32 v4, v0, 1, 1
        v_lshl_add_u32 v4, v4, 2, v9
        v_min_u32 v4, 5, v4
        s_mul_i32 s45, s5, 6
        v_add_u32 v4, s45, v4
        v_lshrrev_b32 v5, 5, v4
        v_lshlrev_b32 v5, 4, v5
        v_and_b32 v6, 8, v0
        v_add_u32 v5, v5, v6
        v_and_b32 v6, 7, v4
        v_add_u32 v5, v5, v6
        v_lshlrev_b32 v5, 4, v5
        v_and_b32 v6, 1, v0
        v_lshl_add_u32 v5, v6, 9, v5
        v_bfe_u32 v7, v4, 3, 2
        s_lshl_b32 s42, s4, 13
        s_add_u32 s42, s42, {GG}""")
        s.gather8(5,'s42',1024,8,3,None,sleep=s.asleep)
        for r in (1,2,3):
            A(f"v_cmp_eq_u32 vcc, {r}, v7\ns_nop 1\nv_cndmask_b32 v8, v8, v{8+r}, vcc")
        A(f"""v_cvt_pk_bf16_f32 v8, v8, v8
        v_and_b32 v8, 0xffff0000, v8
        v_mul_f32 v9, {f2u(-1.4426950408889634):#x}, v8
        v_exp_f32 v9, v9
        s_nop 0
        v_add_f32 v9, 1.0, v9
        v_rcp_f32 v9, v9
        s_nop 0
        v_cvt_pk_bf16_f32 v9, v9, v9
        v_and_b32 v9, 0xffff0000, v9
        s_nop 1
        v_mov_b32_dpp v10, v9 quad_perm:[0,0,0,0] {DPPF}
        v_mov_b32_dpp v11, v9 quad_perm:[2,2,2,2] {DPPF}
        s_nop 0
        v_mul_f32_dpp v10, v8, v10 quad_perm:[1,1,1,1] {DPPF}
        v_mul_f32_dpp v11, v8, v11 quad_perm:[3,3,3,3] {DPPF}
        v_cvt_pk_bf16_f32 v10, v10, v10
        v_cvt_pk_bf16_f32 v11, v11, v11
        v_cmp_gt_u32 vcc, 32, v0
        s_nop 1
        v_cndmask_b32 v11, 0, v11, vcc""")
        for r in range(4):
            A(f"v_and_b32 v{12+r}, v10, v{100+r}\nv_and_b32 v{16+r}, v11, v{100+r}")
        A("s_waitcnt vmcnt(0)")
        for c in range(5):
            A(f"v_mfma_f32_16x16x32_bf16 v[{80+4*c}:{83+4*c}], v[{40+4*c}:{43+4*c}], v[12:15], 0")
        for c in range(5):
            A(f"v_mfma_f32_16x16x32_bf16 v[{80+4*c}:{83+4*c}], v[{60+4*c}:{63+4*c}], v[16:19], v[{80+4*c}:{83+4*c}]")
        A("v_bfe_u32 v4, v0, 3, 1")
        if s.order: A("s_and_b32 s42, s4, 1\nv_xor_b32 v4, s42, v4")
        A(f"""v_mul_u32_u24 v4, 2560, v4
        v_lshrrev_b32 v5, 5, v0
        v_lshl_add_u32 v4, v5, 8, v4
        v_and_b32 v5, 7, v0
        v_lshl_add_u32 v4, v5, 4, v4
        v_bfe_u32 v5, v0, 4, 1
        v_lshl_add_u32 v4, v5, 3, v4
        v_add_u32 v4, {YL}, v4""")
        for c in range(5):
            d=80+4*c
            A(f"ds_write2_b32 v4, v{d}, v{d+2} offset0:0 offset1:1")
            A(f"ds_write2_b32 v4, v{d+1}, v{d+3} offset0:32 offset1:33")
            if c<4: A("v_add_u32 v4, 512, v4")
        A(f"""v_mov_b32 v2, 1
        s_waitcnt lgkmcnt(0)
        ds_write_b32 v1, v2 offset:{F_Y}""")
        if s.mon: s.monitor()
        A("s_endpgm")

    def monitor(s):
        A=s.A; P=s.per; LS=s.ls; R=s.reps
        A(f"""s_and_b32 s45, s4, {R-1}
        s_mul_i32 s49, s45, {LS}
        s_add_u32 s49, s49, {PG2}
        s_lshr_b32 s43, s4, 2
        s_mul_i32 s43, s43, {4*LS}
        s_add_u32 s43, s43, s49
        s_and_b32 s42, s4, {3-(R-1)}
        s_or_b32 s42, s42, s5
        s_lshl_b32 s44, s6, 8
        ds_read_b32 v2, v1 offset:{F_LAND}
        s_waitcnt lgkmcnt(0)
        v_readfirstlane_b32 s50, v2
        s_add_u32 s41, s50, {P}
        s_and_b32 s41, s41, {~(P-1)&0xffffffff:#x}
        L_m_loop:
        s_cmp_gt_u32 s41, {128-P}
        s_cbranch_scc1 L_m_end
        s_cmp_eq_u32 s42, 0
        s_cbranch_scc0 L_m_nopub""")
        s.poll(F_LAND,'s41',sleep=2,cache='s50')
        A(f"""s_add_u32 s45, s44, s41
        v_mov_b32 v6, s45
        s_mov_b64 exec, 1
        buffer_store_dword v6, v1, s[12:15], s43 offen sc1
        s_mov_b64 exec, -1
        L_m_nopub:""")
        A(f"s_add_u32 s45, s41, {s.rph}")
        s.poll(F_LAND,'s45',sleep=2,cache='s50')
        for i in range(8): A(f"s_load_dword s{72+i}, s[38:39], s49 offset:{i*4*LS} glc")
        A(f"""s_add_u32 s45, s44, s41
        s_add_u32 s45, s45, {s.da}
        s_sub_u32 s46, s41, {s.db}
        s_mov_b32 s47, 0
        s_mov_b32 s48, 0
        s_waitcnt lgkmcnt(0)""")
        for i in range(8):
            A(f"s_sub_u32 s55, s{72+i}, s45\ns_cmp_lt_u32 s55, 128\ns_addc_u32 s47, s47, 0")
            A(f"s_sub_u32 s55, s{72+i}, s44\ns_cmp_lt_u32 s55, s46\ns_addc_u32 s48, s48, 0")
        A(f"""s_cmp_ge_u32 s48, {s.tb}
        s_cselect_b32 s48, 2, 0
        s_cmp_ge_u32 s47, {s.ta}
        s_cselect_b32 s48, 1, s48
        v_mov_b32 v2, s48
        ds_write_b32 v1, v2 offset:{F_MODE}""")
        A(f"""s_add_u32 s41, s41, {P}
        s_branch L_m_loop
        L_m_end:""")

    def stage1(s):
        A=s.A
        A("L_stage1:")
        s.srd(40,16,2560)
        A("""v_bfe_u32 v2, v0, 3, 1
        v_mul_u32_u24 v2, 1280, v2
        v_lshrrev_b32 v116, 4, v0
        v_and_b32 v117, 7, v0
        v_lshl_add_u32 v3, v116, 3, v117
        v_mul_u32_u24 v3, 40, v3
        v_add_u32 v3, v3, v2
        buffer_load_dwordx4 v[4:7], v3, s[40:43], 0 offen
        buffer_load_dwordx4 v[8:11], v3, s[40:43], 0 offen offset:16
        buffer_load_dwordx2 v[12:13], v3, s[40:43], 0 offen offset:32
        v_lshl_add_u32 v2, v116, 2, v2
        s_mul_i32 s44, s5, 160""")
        for Gi in range(10):
            A(f"buffer_load_dword v{14+Gi}, v2, s[40:43], s44 offen offset:{16*Gi}")
        A(f"""s_sub_u32 s45, s3, 4
        s_cmp_eq_u32 s45, 3
        s_cselect_b32 s8, s28, s30
        s_cselect_b32 s9, s29, s31
        s_mul_i32 s46, s4, 96
        s_mul_i32 s47, s4, 384
        s_lshl_b32 s48, s45, 7
        s_add_u32 s47, s47, s48
        s_cmp_lt_u32 s45, 3
        s_cselect_b32 s8, s22, s8
        s_cselect_b32 s9, s23, s9
        s_cselect_b32 s10, 7864320, 1966080
        s_mov_b32 s11, 0x20000
        s_cselect_b32 s46, s47, s46
        s_cselect_b32 s47, 12288, 3072
        s_cselect_b32 s48, 8, 6
        v_lshrrev_b32 v118, 3, v0
        v_mul_lo_u32 v118, v118, s47
        v_lshl_add_u32 v118, v117, 4, v118
        v_cmp_le_u32 vcc, s48, v117
        v_mov_b32 v119, 0x80000000
        s_mul_i32 s48, s5, 80
        s_mul_i32 s48, s48, s47
        v_cndmask_b32 v118, v118, v119, vcc
        s_add_u32 s46, s46, s48
        s_lshl_b32 s47, s47, 3""".replace("s_cselect_b32 s10, 7864320, 1966080","s_mov_b32 s10, 1966080\ns_cselect_b32 s10, 7864320, s10").replace("s_cselect_b32 s47, 12288, 3072","s_movk_i32 s47, 3072\ns_cselect_b32 s47, 12288, s47"))
        for Gi in range(10):
            A(f"buffer_load_dwordx4 v[{24+4*Gi}:{27+4*Gi}], v118, s[8:11], s46 offen nt")
            if Gi<9: A("s_add_u32 s46, s46, s47")
        A("s_barrier")
        s.masks(92,2,3)
        A("v_mov_b32 v2, 0x0c0c0c0c\ns_mov_b32 s48, 0x01000100\ns_mov_b32 s49, 0x03020302")
        for r in range(4):
            A(f"v_bfi_b32 v{84+r}, v{92+r}, s48, v2\nv_bfi_b32 v{88+r}, v{92+r}, s49, v2")
        A("s_waitcnt vmcnt(20)")
        for i in range(10):
            A(f"v_lshlrev_b32 v{64+2*i}, 16, v{4+i}\nv_and_b32 v{65+2*i}, 0xffff0000, v{4+i}")
        for i in range(10): A(f"v_add_f32 v{4+i}, v{64+2*i}, v{65+2*i}")
        for i in range(5): A(f"v_add_f32 v{4+i}, v{4+i}, v{9+i}")
        A("v_add_f32 v4, v4, v5\nv_add_f32 v6, v6, v7\nv_add_f32 v4, v4, v8\nv_add_f32 v4, v4, v6")
        def red32(v,t):
            for c in ("quad_perm:[1,0,3,2]","quad_perm:[2,3,0,1]","row_half_mirror"):
                A(f"s_nop 1\nv_add_f32_dpp v{v}, v{v}, v{v} {c} {DPPF}")
            s.swapred('v_add_f32',v,t,16)
            s.swapred('v_add_f32',v,t,32)
        red32(4,5)
        A(f"v_mul_f32 v4, {f2u(1/640):#x}, v4")
        for i in range(20): A(f"v_sub_f32 v{64+i}, v{64+i}, v4")
        for i in range(4): A(f"v_mul_f32 v{6+i}, v{64+i}, v{64+i}")
        for i in range(4,20): A(f"v_fmac_f32 v{6+i%4}, v{64+i}, v{64+i}")
        A("v_add_f32 v6, v6, v7\nv_add_f32 v8, v8, v9\nv_add_f32 v6, v6, v8")
        red32(6,5)
        A(f"""v_mul_f32 v6, {f2u(1/640):#x}, v6
        v_cvt_pk_bf16_f32 v4, v4, v6
        v_and_b32 v6, 0xffff0000, v4
        v_lshlrev_b32 v4, 16, v4
        v_add_f32 v6, {f2u(1e-5):#x}, v6
        v_cvt_pk_bf16_f32 v6, v6, v6
        v_and_b32 v6, 0xffff0000, v6
        v_sqrt_f32 v6, v6
        s_nop 0
        v_cvt_pk_bf16_f32 v6, v6, v6
        v_and_b32 v6, 0xffff0000, v6
        v_rcp_f32 v6, v6
        s_waitcnt vmcnt(10) lgkmcnt(0)
        s_add_u32 s6, s6, 1""")
        for i in range(10):
            A(f"v_lshlrev_b32 v{64+2*i}, 16, v{14+i}\nv_and_b32 v{65+2*i}, 0xffff0000, v{14+i}")
        for i in range(20): A(f"v_sub_f32 v{64+i}, v{64+i}, v4")
        for i in range(10): A(f"v_cvt_pk_bf16_f32 v{14+i}, v{64+2*i}, v{65+2*i}")
        for i in range(10):
            A(f"v_lshlrev_b32 v{64+2*i}, 16, v{14+i}\nv_and_b32 v{65+2*i}, 0xffff0000, v{14+i}")
        for i in range(20): A(f"v_mul_f32 v{64+i}, v{64+i}, v6")
        for i in range(10): A(f"v_cvt_pk_bf16_f32 v{14+i}, v{64+2*i}, v{65+2*i}")
        for Gi in range(10):
            b=92+8*(Gi&1)
            for r in range(8):
                A(f"v_perm_b32 v{b+r}, v{14+Gi}, v{14+Gi}, v{84+r}")
            if Gi>0:
                pb=92+8*((Gi-1)&1); w=24+4*(Gi-1)
                A(f"s_waitcnt vmcnt({10-Gi})")
                A(f"v_mfma_f32_16x16x32_bf16 v[108:111], v[{w}:{w+3}], v[{pb}:{pb+3}], {'0' if Gi==1 else 'v[108:111]'}")
                A(f"v_mfma_f32_16x16x32_bf16 v[112:115], v[{w}:{w+3}], v[{pb+4}:{pb+7}], {'0' if Gi==1 else 'v[112:115]'}")
        A("s_waitcnt vmcnt(0)")
        A("v_mfma_f32_16x16x32_bf16 v[108:111], v[60:63], v[100:103], v[108:111]")
        A("v_mfma_f32_16x16x32_bf16 v[112:115], v[60:63], v[104:107], v[112:115]")
        A(f"""v_bfe_u32 v2, v0, 3, 1
        v_mul_u32_u24 v2, 6144, v2
        v_lshl_add_u32 v3, v116, 3, v117
        v_lshl_add_u32 v2, v3, 4, v2
        v_lshlrev_b32 v3, 4, v0
        s_mul_i32 s46, s4, 12288
        s_mul_i32 s47, s5, 768
        s_add_u32 s46, s46, s47
        s_lshl_b32 s47, s45, 8
        s_add_u32 s46, s46, s47
        s_add_u32 s46, s46, {QG}
        s_lshl_b32 s47, s4, 3
        s_add_u32 s47, s47, s5
        s_lshl_b32 s47, s47, 1
        s_add_u32 s47, s47, s45
        s_lshl_b32 s47, s47, 9
        s_add_u32 s47, s47, {GG-3*512}
        s_cmp_lt_u32 s45, 3
        s_cselect_b32 s46, s46, s47
        s_cselect_b64 vcc, -1, 0
        v_cndmask_b32 v2, v3, v2, vcc
        v_mov_b32 v3, 0xff""")
        for r in range(4):
            A(f"v_permlane32_swap_b32 v{112+r}, v{4+r}")
        for r in range(4):
            A(f"v_add_f32 v{108+r}, v{108+r}, v{4+r}")
        for r in range(4):
            A(f"v_bfi_b32 v{108+r}, v3, s6, v{108+r}")
        A("""s_mov_b32 exec_hi, 0
        buffer_store_dwordx4 v[108:111], v2, s[12:15], s46 offen sc1
        s_mov_b64 exec, 1
        v_mov_b32 v3, 1
        ds_add_u32 v1, v3 offset:%d
        s_mov_b64 exec, -1"""%F_S1)
        if s.TS:
            A("s_cmp_eq_u32 s3, 4\ns_cbranch_scc0 L_s1_ns")
            s.stamp(6)
            A("L_s1_ns:")
        A("s_branch L_hold")

    def holder(s):
        A=s.A
        A("L_hold_bar:\ns_waitcnt lgkmcnt(0)\ns_barrier\ns_add_u32 s6, s6, 1")
        A("L_hold:")
        s.srd(8,24,7864320)
        A("s_sub_u32 s40, s3, 4")
        s.masks(4,2,3)
        A("""v_lshrrev_b32 v8, 4, v0
        v_bfe_u32 v9, v0, 3, 1
        v_sub_u32 v9, v8, v9
        v_mov_b32 v10, 0x3f803f80""")
        for sidx in range(2):
            A(f"v_cmp_eq_u32 vcc, {2*sidx}, v9\ns_nop 1\nv_cndmask_b32 v11, 0, v10, vcc")
            for r in range(4):
                A(f"v_and_b32 v{20+4*sidx+r}, v11, v{4+r}")
        A(f"""v_and_b32 v3, 3, v0
        v_lshlrev_b32 v3, 2, v3
        v_bfe_u32 v9, v0, 2, 1
        v_add_u32 v3, v3, v9
        v_mul_u32_u24 v3, 2560, v3
        v_lshl_add_u32 v3, v8, 4, v3
        v_and_b32 v9, 8, v0
        v_lshl_add_u32 v3, v9, 3, v3
        s_mul_i32 s41, s4, {192*1280}
        s_lshl_b32 s42, s40, 7
        s_add_u32 s41, s41, s42
        s_mov_b32 s50, 0""")
        A("s_mov_b32 s44, s40")
        A(f"L_h_mod:\ns_cmp_lt_u32 s44, {s.pace}\ns_cbranch_scc1 L_h_modd\ns_sub_u32 s44, s44, {s.pace}\ns_branch L_h_mod\nL_h_modd:")
        A(f"s_add_u32 s44, s44, {s.pace0}")
        F=lambda tile,B: 32+4*(B*4+tile)
        for B in range(6):
            A(f"s_add_u32 s42, s41, {4*1280}")
            for t in range(2):
                for gh in range(2):
                    s.poll(F_LAND, 's44', sleep=8, cache='s50')
                    f=F(2*t+gh,B)
                    if not s.nowo: A(f"buffer_load_dwordx4 v[{f}:{f+3}], v3, s[8:11], {'s42' if gh else 's41'} offen offset:{1280*t} nt")
                    A(f"s_add_u32 s44, s44, {s.pace}")
            A(f"s_add_u32 s41, s41, {32*1280}\ns_waitcnt vmcnt(0)")
            for t in range(2):
                f0=F(2*t,B); f1=F(2*t+1,B)
                A(f"v_mfma_f32_16x16x32_bf16 v[4:7], v[{f0}:{f0+3}], v[20:23], 0")
                A(f"v_mfma_f32_16x16x32_bf16 v[8:11], v[{f1}:{f1+3}], v[20:23], 0")
                A(f"v_mfma_f32_16x16x32_bf16 v[12:15], v[{f0}:{f0+3}], v[24:27], 0")
                A(f"v_mfma_f32_16x16x32_bf16 v[16:19], v[{f1}:{f1+3}], v[24:27], 0")
                A("s_nop 7")
                for sidx in range(2):
                    for gh in range(2):
                        tile=2*gh+sidx
                        if t==0 and tile>=2: dst=28+2*(tile-2)
                        else: dst=F(tile,B)+2*t
                        src=4+8*sidx+4*gh
                        A(f"v_cvt_pk_bf16_f32 v{dst}, v{src}, v{src+1}\nv_cvt_pk_bf16_f32 v{dst+1}, v{src+2}, v{src+3}")
            for i in range(2):
                A(f"v_mov_b32 v{F(2,B)+i}, v{28+i}\nv_mov_b32 v{F(3,B)+i}, v{30+i}")
            A("s_nop 1")
            for sidx in range(2):
                for i in range(4):
                    A(f"v_permlane32_swap_b32 v{F(sidx,B)+i}, v{F(2+sidx,B)+i}")
        s.poll(F_Y, 1, sleep=8)
        A(f"""v_and_b32 v3, 3, v0
        v_mul_u32_u24 v3, 384, v3
        v_lshrrev_b32 v2, 4, v0
        v_lshl_add_u32 v3, v2, 4, v3
        v_and_b32 v0, 15, v0
        v_lshlrev_b32 v0, 4, v0
        s_mov_b32 s41, 0
        s_lshl_b32 s42, s40, 8
        s_lshl_b32 s43, s4, 3
        s_add_u32 s43, s43, s5
        s_mul_i32 s43, s43, 2560
        s_add_u32 s43, s43, s42
        s_add_u32 s43, s43, {YG}
        s_add_u32 s42, s42, {YL}
        s_mov_b32 s44, 62
        s_mov_b32 s45, 2""")
        A("L_h_seg:")
        A("v_add_u32 v2, s42, v0\nds_read_b128 v[20:23], v2")
        for t in range(4):
            for r in range(1,4): A(f"v_mov_b32 v{4+4*t+r}, 0")
        A("s_waitcnt lgkmcnt(0)")
        for t in range(4): A(f"v_mov_b32 v{4+4*t}, v{20+t}")
        s.poll(F_LAND,'s44',sleep=16,cache='s50')
        s.poll(F_O,'s45',sleep=1)
        for B in range(3):
            A(f"ds_read_b128 v[{20+4*B}:{23+4*B}], v3 offset:{OB+64*B}")
        for B in range(6):
            a=20+4*(B%3)
            A(f"s_waitcnt lgkmcnt({2 if B<4 else 5-B})")
            for t in range(4):
                f=F(t,B)
                A(f"v_mfma_f32_16x16x32_bf16 v[{4+4*t}:{7+4*t}], v[{a}:{a+3}], v[{f}:{f+3}], v[{4+4*t}:{7+4*t}]")
            if B<3: A(f"ds_read_b128 v[{a}:{a+3}], v3 offset:{OB+64*(B+3)}")
        A("v_mov_b32 v2, 0xff\ns_nop 3")
        for t in range(4):
            d=4+4*t
            A(f"v_add_f32 v{d}, v{d}, v{d+1}\nv_add_f32 v{d+2}, v{d+2}, v{d+3}")
        for t in range(4):
            d=4+4*t
            A(f"v_add_f32 v{20+t}, v{d}, v{d+2}")
        for t in range(4):
            A(f"v_bfi_b32 v{20+t}, v2, s6, v{20+t}")
        if s.ydef: s.poll(F_LAND, s.ydef, sleep=8, cache='s50')
        A(f"""s_mov_b64 exec, 0xffff
        buffer_store_dwordx4 v[20:23], v0, s[12:15], s43 offen sc1
        s_mov_b64 exec, -1
        v_add_u32 v3, 1536, v3
        s_add_u32 s42, s42, 2560
        s_add_u32 s43, s43, {256*2560}
        s_add_u32 s44, s44, 64
        s_add_u32 s45, s45, 2
        s_add_u32 s41, s41, 1
        s_cmp_lt_u32 s41, 2
        s_cbranch_scc1 L_h_seg""")
        if s.TS:
            A("s_cmp_eq_u32 s3, 4\ns_cbranch_scc0 L_h_ns")
            s.stamp(5)
            A("s_cmp_ge_u32 s2, 80\ns_cbranch_scc0 L_h_ns")
            s.stamp(1)
            A("L_h_ns:")
        A("s_endpgm")

    def final(s):
        A=s.A
        A("L_final:\ns_waitcnt lgkmcnt(0)\ns_barrier")
        A("s_cmp_ge_u32 s2, 80\ns_cbranch_scc1 L_end")
        A("s_add_u32 s6, s6, 1")
        s.srd(40,16,2560)
        s.srd(8,34,2560)
        A(f"""s_and_b32 s44, s2, 7
        s_mul_i32 s44, s44, 10
        s_lshr_b32 s45, s2, 3
        s_add_u32 s44, s44, s45
        s_lshl_b32 s44, s44, 1
        s_add_u32 s44, s44, s3
        s_sub_u32 s44, s44, 14
        s_cmp_ge_u32 s44, 80
        s_cselect_b32 s45, 1, 0
        s_cselect_b32 s46, 80, 0
        s_sub_u32 s44, s44, s46""")
        A(f"""s_lshr_b32 s46, s44, 3
        s_lshl_b32 s46, s46, 7
        s_and_b32 s47, s44, 7
        s_lshl_b32 s47, s47, 2
        s_add_u32 s46, s46, s47
        s_mul_i32 s47, s45, 1280
        s_add_u32 s46, s46, s47
        v_bfe_u32 v4, v0, 4, 1
        v_lshlrev_b32 v4, 6, v4
        v_lshrrev_b32 v5, 5, v0
        v_lshl_add_u32 v4, v5, 5, v4
        v_and_b32 v5, 1, v0
        v_lshl_add_u32 v4, v5, 1, v4
        v_add_u32 v4, s46, v4
        buffer_load_ushort v6, v4, s[40:43], 0 offen
        v_lshrrev_b32 v7, 4, v0
        v_lshlrev_b32 v7, 4, v7
        v_bfe_u32 v3, v0, 1, 3
        v_add_u32 v7, v7, v3
        v_mul_u32_u24 v7, 2560, v7
        v_lshl_add_u32 v7, v5, 4, v7
        s_lshl_b32 s44, s44, 5
        s_add_u32 s44, s44, {YG}
        s_mov_b32 s47, 0
        s_mov_b32 s48, {s.fin0}
        s_mov_b32 s49, 2
        s_mov_b32 s50, 0""")
        for r in range(4): A(f"v_mov_b32 v{24+r}, 0")
        A("L_f_seg:")
        if s.order:
            A(f"s_xor_b32 s51, s45, s47\ns_mul_i32 s51, s51, {8*2560}\ns_add_u32 s51, s51, s44")
        else:
            raise NotImplementedError
        for j in range(1,4): A(f"s_add_u32 s{51+j}, s51, {j*64*2560}")
        for j in range(4): A(f"s_mov_b64 s[{56+2*j}:{57+2*j}], -1")
        s.poll(F_LAND,'s48',sleep=16,cache='s50')
        s.poll(F_O,'s49',sleep=2)
        A("L_f_poll:")
        for j in range(4):
            A(f"""s_mov_b64 exec, s[{56+2*j}:{57+2*j}]
            s_cbranch_execz L_f_sk{j}
            buffer_load_dwordx4 v[{8+4*j}:{11+4*j}], v7, s[12:15], s{51+j} offen sc1
            L_f_sk{j}:""")
        A("s_mov_b64 exec, -1\ns_waitcnt vmcnt(0)")
        for j in range(4):
            d=8+4*j
            A(f"""v_xor_b32 v{28+j}, s6, v{d}
            v_bitop3_b32 v{28+j}, v{28+j}, v{d+1}, s6 bitop3:0xf6
            v_bitop3_b32 v{28+j}, v{28+j}, v{d+2}, s6 bitop3:0xf6
            v_bitop3_b32 v{28+j}, v{28+j}, v{d+3}, s6 bitop3:0xf6""")
        A("s_nop 0")
        for j in range(4):
            A(f"v_or_b32_dpp v{28+j}, v{28+j}, v{28+j} quad_perm:[1,0,3,2] {DPPF}")
        for j in range(4):
            A(f"v_and_b32 v{28+j}, 0xff, v{28+j}")
        for j in range(4):
            A(f"v_cmp_ne_u32 s[{56+2*j}:{57+2*j}], 0, v{28+j}")
        A("""s_or_b64 s[64:65], s[56:57], s[58:59]
        s_or_b64 s[66:67], s[60:61], s[62:63]
        s_or_b64 s[64:65], s[64:65], s[66:67]
        s_cbranch_scc0 L_f_ok
        s_sleep 1
        s_sub_u32 s7, s7, 1
        s_cbranch_scc0 L_f_poll
        s_endpgm
        L_f_ok:""")
        for i in range(16): A(f"v_and_b32 v{8+i}, 0xffffff00, v{8+i}")
        for i in range(8): A(f"v_add_f32 v{8+i}, v{8+i}, v{16+i}")
        for i in range(4): A(f"v_add_f32 v{24+i}, v{24+i}, v{12+i}")
        for i in range(4): A(f"v_add_f32 v{24+i}, v{24+i}, v{8+i}")
        A(f"""s_add_u32 s44, s44, {256*2560}
        s_mov_b32 s48, 126
        s_add_u32 s49, s49, 2
        s_add_u32 s47, s47, 1
        s_cmp_lt_u32 s47, 2
        s_cbranch_scc1 L_f_seg
        v_permlane32_swap_b32 v24, v25
        v_permlane32_swap_b32 v26, v27
        v_add_f32 v24, v24, v25
        v_add_f32 v26, v26, v27
        v_lshlrev_b32 v6, 16, v6
        s_nop 0
        v_permlane16_swap_b32 v24, v26
        v_add_f32 v24, v24, v26""")
        for c in ("quad_perm:[2,3,0,1]","row_ror:4","row_ror:8"):
            A(f"s_nop 1\nv_add_f32_dpp v24, v24, v24 {c} {DPPF}")
        A("""v_add_f32 v24, v24, v6
        v_cvt_pk_bf16_f32 v24, v24, v24
        s_mov_b32 exec_lo, 0x00030003
        s_mov_b32 exec_hi, 0x00030003
        buffer_store_short v24, v4, s[8:11], 0 offen
        s_mov_b64 exec, 1
        s_cmp_eq_u32 s2, 0
        s_cbranch_scc0 L_f_noep
        s_cmp_eq_u32 s3, 14
        s_cbranch_scc0 L_f_noep
        v_mov_b32 v2, s6
        buffer_store_dword v2, v1, s[12:15], 0 offen
        L_f_noep:
        s_mov_b64 exec, -1""")
        if s.TS:
            A("s_cmp_eq_u32 s3, 14\ns_cbranch_scc0 L_end")
            s.stamp(1)
        A("L_end:")

    def build(s):
        s.prologue(); s.loader(); s.common2(); s.consumer(); s.aux(); s.stage1(); s.holder(); s.final()
        errs=hazard.check(s.L)
        for e in errs: print(e)
        if errs: raise SystemExit("hazards")
        return "\n".join(("    "+l if not l.endswith(':') else l) for l in s.L)

HEADER=open('parallel_sum__gqa_block_cached__glu_gated_glu__decode.s.ref').read().split('; Override launch')[0]
def full(body):
    return HEADER+f"; @launch grid=(256,1,1) block=(1024,1,1) lds={LDS_BYTES}\n"+wrap(NAME,body,128,128,sgpr=96)

if __name__=="__main__":
    if len(sys.argv)>1 and sys.argv[1]=='bench':
        cfgs=eval(sys.argv[2]); args=[]; files=[]
        for c in cfgs:
            nm="k_"+"_".join(f"{k}{v}" for k,v in c.items())
            body=G(**c).build()
            build(nm,NAME,wrap(NAME,body,128,128,sgpr=96),128,1024,sgpr=96)
            args+=[f"work/{nm}.co",NAME,"256","1024",str(LDS_BYTES)]; files.append(f"work/{nm}.co")
        open('last_args.txt','w').write(" ".join(args))
        import json; print(json.dumps(["work/bench","work/last_args.txt"]+files))
    else:
        kw=eval(sys.argv[2]) if len(sys.argv)>2 else {}
        out=sys.argv[1] if len(sys.argv)>1 else 'parallel_sum__gqa_block_cached__glu_gated_glu__decode.s'
        open(out,'w').write(full(G(**kw).build()))
        print("written",out)
```

```python
import sys, struct
from common import *
import hazard

NAME="parallel_sum__gqa_block_cached__glu_gated_glu__decode_kernel"
KVB=201326592; BST=100663296; HST=3145728
F_LAND=0; F_FREE=4; F_Q=12; F_O=16; F_Y=20; F_S1=24; F_MODE=28
QB=256; OB=1024; SC=4096; YL=8192; RING=16384; SLOT=12288; NSLOT=12
LDS_BYTES=RING+SLOT*NSLOT
MLG=4096; PG=20480; QG=32768; GG=425984; YG=688128; WSB=2097152; PG2=2031616
def f2u(x): return struct.unpack('<I',struct.pack('<f',x))[0]
SCALE=f2u(192**-0.5); LOG2E=f2u(1.4426950408889634)
DPPF="row_mask:0xf bank_mask:0xf"

class G:
    def __init__(s, N=21, TS=0, rot=1, order=1, pace0=12, pace=2, fin0=90, asleep=4, NT=None, tailn=0, noswz=0, nowo=0, csleep=1, nofree=0, prio=3, mon=0, NH=30, NL=16, tg=3, ta=3, tb=3, per=4, oth=0, mst='sc1', rph=2, fl=1, ls=1152, reps=1, da=1, db=0, ydef=0, nogl=0, DBG=0):
        s.DBG=DBG
        s.reps=reps; s.da=da; s.db=db; s.ydef=ydef; s.nogl=nogl
        s.fl=fl; s.ls=ls
        s.oth=oth; s.mst=mst; s.rph=rph
        s.mon=mon; s.NH=NH; s.NL=NL; s.tg=tg; s.ta=ta; s.tb=tb; s.per=per
        s.noswz=noswz; s.nowo=nowo; s.csleep=csleep; s.nofree=nofree; s.prio=prio
        s.L=[]; s.N=N; s.TS=TS; s.rot=rot; s.order=order; s.uid=0; s.pace0=pace0; s.pace=pace; s.fin0=fin0; s.asleep=asleep
        s.NT=NT; s.tailn=tailn
    def A(s,x):
        for l in x.split('\n'):
            l=l.strip()
            if l: s.L.append(l)
    def lab(s,p):
        s.uid+=1; return f"L_{p}_{s.uid}"
    def stamp(s,slot,mode=1):
        if not s.TS: return
        if slot in (2,4,5,6) and mode!=s.TS: return
        if s.DBG:
            s.A(f"""s_memrealtime s[90:91]
            s_mov_b64 s[94:95], exec
            s_mov_b64 exec, 1
            s_waitcnt lgkmcnt(0)
            s_sub_u32 s91, s90, s88
            s_not_b32 s92, s88
            v_mov_b32 v2, {'s92' if slot==0 else 's90'}
            v_mov_b32 v3, s91
            global_atomic_umax v1, v2, s[36:37] offset:{slot*4} sc1
            global_atomic_add v1, v3, s[36:37] offset:{32+slot*4} sc1
            s_mov_b64 exec, s[94:95]""")
            return
        s.A(f"""s_memrealtime s[90:91]
        s_add_u32 s92, s38, 0x20000000
        s_addc_u32 s93, s39, 0
        s_lshl_b32 s94, s2, 6
        s_add_u32 s92, s92, s94
        s_addc_u32 s93, s93, 0
        s_waitcnt lgkmcnt(0)
        v_mov_b32 v2, s90
        v_mov_b32 v3, s91
        global_store_dwordx2 v1, v[2:3], s[92:93] offset:{slot*8}""")
    def poll(s, off, need, sleep=1, cache=None, tmp='s46', vaddr='v1'):
        l=s.lab('pl'); d=s.lab('pd')
        if cache:
            s.A(f"s_cmp_ge_u32 {cache}, {need}\ns_cbranch_scc1 {d}")
            tmp=cache
        s.A(f"""{l}:
        ds_read_b32 v2, {vaddr} offset:{off}
        s_waitcnt lgkmcnt(0)
        v_readfirstlane_b32 {tmp}, v2
        s_cmp_ge_u32 {tmp}, {need}
        s_cbranch_scc1 {d}
        s_sleep {sleep}
        s_sub_u32 s7, s7, 1
        s_cbranch_scc0 {l}
        s_endpgm
        {d}:""")
    def masks(s, m0, t0, t1):
        s.A(f"""v_and_b32 v{t0}, 1, v0
        v_lshlrev_b32 v{t0}, 4, v{t0}
        v_mov_b32 v{t1}, 0xffff
        v_lshlrev_b32 v{t0}, v{t0}, v{t1}
        v_bfe_u32 v{t1}, v0, 1, 2""")
        for r in range(4):
            s.A(f"v_cmp_eq_u32 vcc, {r}, v{t1}\ns_nop 1\nv_cndmask_b32 v{m0+r}, 0, v{t0}, vcc")
    def rowred(s, op, v, t=None):
        for c in ("quad_perm:[1,0,3,2]","quad_perm:[2,3,0,1]","row_half_mirror","row_mirror"):
            s.A(f"s_nop 1\n{op}_dpp v{v}, v{v}, v{v} {c} {DPPF}")
    def swapred(s, op, v, t, which):
        s.A(f"""v_mov_b32 v{t}, v{v}
        s_nop 1
        v_permlane{which}_swap_b32 v{v}, v{t}
        {op} v{v}, v{v}, v{t}""")
    def srd(s, d, ptr, size):
        s.A(f"s_mov_b32 s{d}, s{ptr}\ns_mov_b32 s{d+1}, s{ptr+1}\ns_mov_b32 s{d+2}, {size}\ns_mov_b32 s{d+3}, 0x20000")

    def prologue(s):
        A=s.A
        if s.TS: A("s_memrealtime s[88:89]")
        A("""s_load_dwordx16 s[16:31], s[0:1], 0
        s_load_dwordx8 s[32:39], s[0:1], 64
        s_cmp_ge_u32 s2, 256
        s_cbranch_scc1 L_end
        v_lshrrev_b32 v1, 6, v0
        v_and_b32 v0, 63, v0
        v_readfirstlane_b32 s3, v1
        s_and_b32 s4, s2, 7
        s_lshr_b32 s5, s2, 3
        s_lshr_b32 s6, s5, 3
        s_lshl_b32 s4, s4, 2
        s_add_u32 s4, s4, s6
        s_and_b32 s5, s5, 7
        s_mov_b32 s7, 0x400000
        v_mov_b32 v1, 0
        s_cmp_eq_u32 s3, 0
        s_cbranch_scc0 L_notloader""")

    def loader(s):
        A=s.A; N=s.N
        A(f"s_setprio {s.prio}")
        A("""v_lshrrev_b32 v4, 3, v0
        v_and_b32 v5, 7, v0
        v_lshlrev_b32 v6, 7, v4
        v_lshlrev_b32 v9, 4, v0""")
        for k in range(6):
            A(f"""v_add_u32 v7, {8*k}, v4
            v_mul_u32_u24 v7, 43, v7
            v_lshrrev_b32 v7, 8, v7
            {'v_mov_b32 v7, v5' if s.noswz else 'v_xor_b32 v7, v7, v5'}
            v_lshl_add_u32 v{10+k}, v7, 4, v6""")
        A("s_mul_i32 s40, s4, %d"%HST)
        A("s_mov_b32 s41, 0")
        A(f"s_mov_b32 s42, {RING}")
        A("s_mov_b32 s43, 0")
        A("s_mov_b32 s50, 0\ns_mov_b32 s51, 0\ns_mov_b32 s52, 0\ns_mov_b32 s53, 0\ns_mov_b32 s54, 0")
        A("s_waitcnt lgkmcnt(0)")
        A(f"s_mov_b32 s10, {KVB}\ns_mov_b32 s11, 0x20000")
        s.stamp(0)
        if s.TS and not s.DBG:
            A("v_mov_b32 v2, s88\nv_mov_b32 v3, s89\nglobal_store_dwordx2 v1, v[2:3], s[92:93]")
        A("L_ld_phase:")
        if s.TS==2:
            A("v_mov_b32 v30, v3")
            for ph,sl in enumerate((2,4,5,6)):
                A(f"s_cmp_eq_u32 s43, {ph}\ns_cbranch_scc0 L_ld_st{ph}")
                A("s_waitcnt lgkmcnt(0)\nv_mov_b32 v30, v3")
                s.stamp(sl,2)
                A(f"v_mov_b32 v3, v30\nL_ld_st{ph}:")
        A("s_lshr_b32 s44, s43, 1")
        if s.order: A("s_xor_b32 s44, s44, s4")
        A(f"""s_and_b32 s44, s44, 1
        s_mul_i32 s44, s44, {BST}
        s_add_u32 s44, s44, s40
        s_and_b32 s45, s43, 1
        s_cselect_b32 s8, s20, s18
        s_cselect_b32 s9, s21, s19
        s_cselect_b64 vcc, -1, 0""")
        for k in range(6):
            A(f"v_cndmask_b32 v{20+k}, v{10+k}, v9, vcc")
        A("s_mov_b32 s45, 0")
        A("L_ld_chunk:")
        A(f"""s_lshr_b32 s47, s41, 1
        s_sub_u32 s47, s47, {NSLOT//2-1 if not s.nofree else 1000}
        s_cbranch_scc1 L_ld_go
        s_waitcnt lgkmcnt(0)
        v_readfirstlane_b32 s50, v3
        v_readfirstlane_b32 s52, v5
        s_cmp_ge_u32 s50, s47
        s_cbranch_scc1 L_ld_go
        s_waitcnt vmcnt(0)
        s_mov_b32 s51, s41
        v_mov_b32 v2, s41
        ds_write_b32 v1, v2 offset:{F_LAND}""")
        s.poll(F_FREE, 's47', sleep=1, vaddr='v4')
        A("L_ld_go:")
        if s.rot:
            A("s_add_u32 s46, s45, s5\ns_and_b32 s46, s46, 7")
        else:
            A("s_mov_b32 s46, s5")
        A(f"""s_lshl_b32 s47, s45, 3
        s_add_u32 s46, s46, s47
        s_mul_i32 s46, s46, {SLOT}
        s_add_u32 s46, s46, s44""")
        def body(N, tag):
            pubk=(N-1)%12; pubd=(N-1-pubk)//12
            for k in range(12):
                if k%4==0:
                    A(f"s_add_u32 m0, s42, {k*1024}\ns_add_u32 s47, s46, {k*1024}")
                A(f"s_waitcnt vmcnt({N-1})")
                if k==pubk:
                    A(f"""s_sub_u32 s48, s41, {pubd}
                    s_max_i32 s51, s51, s48
                    v_mov_b32 v2, s51
                    ds_write_b32 v1, v2 offset:{F_LAND}""")
                A(f"buffer_load_dwordx4 v{20+k%6}, s[8:11], s47 offen offset:{(k%4)*1024} nt lds")
                if k==6 and tag=='':
                    A("""s_cmp_eq_u32 s41, 1
                    s_cbranch_scc0 L_ld_nobar
                    s_barrier
                    L_ld_nobar:""")
                if k==9:
                    A(f"""s_and_b32 s48, s41, 1
                    s_xor_b32 s48, s48, 1
                    s_lshl_b32 s48, s48, 2
                    v_mov_b32 v4, s48
                    ds_read_b32 v3, v4 offset:{F_FREE}""")
                    if s.mon: A(f"ds_read_b32 v5, v1 offset:{F_MODE}")
        assert N>=13
        if s.tailn:
            A(f"s_cmp_ge_u32 s41, {128-s.tailn}\ns_cbranch_scc1 L_ld_tail")
        if s.mon:
            A("s_cmp_eq_u32 s52, 1\ns_cbranch_scc1 L_ld_hi\ns_cmp_eq_u32 s52, 2\ns_cbranch_scc1 L_ld_lo")
        body(N,'')
        if s.tailn:
            A("s_branch L_ld_next\nL_ld_tail:")
            body(s.NT,'t')
        if s.mon:
            A("s_branch L_ld_next\nL_ld_hi:")
            if s.TS: A("s_add_u32 s53, s53, 1")
            body(s.NH,'h')
            A("s_branch L_ld_next\nL_ld_lo:")
            if s.TS: A("s_add_u32 s54, s54, 1")
            body(s.NL,'l')
        A("L_ld_next:")
        A(f"""s_add_u32 s42, s42, {SLOT}
        s_cmp_ge_u32 s42, {RING+SLOT*NSLOT}
        s_cselect_b32 s42, {RING}, s42
        s_add_u32 s41, s41, 1
        s_add_u32 s45, s45, 1
        s_cmp_lt_u32 s45, 32
        s_cbranch_scc1 L_ld_chunk
        s_add_u32 s43, s43, 1
        s_cmp_lt_u32 s43, 4
        s_cbranch_scc1 L_ld_phase""")
        NE = max(s.NT if s.tailn else N, s.NH if s.mon else N)
        for x in range((NE-1)//12,-1,-1):
            A(f"s_max_i32 s51, s51, {128-x}\nv_mov_b32 v2, s51\ns_waitcnt vmcnt({12*x})\nds_write_b32 v1, v2 offset:{F_LAND}")
        s.stamp(3)
        if s.TS and not s.DBG:
            A("s_getreg_b32 s90, hwreg(HW_REG_XCC_ID)\ns_lshl_b32 s53, s53, 8\ns_lshl_b32 s54, s54, 16\ns_and_b32 s90, s90, 15\ns_or_b32 s90, s90, s53\ns_or_b32 s90, s90, s54\nv_mov_b32 v2, s90\nv_mov_b32 v3, 0\nglobal_store_dwordx2 v1, v[2:3], s[92:93] offset:56")
        A("s_endpgm")

    def common2(s):
        A=s.A
        A("L_notloader:")
        A("s_waitcnt lgkmcnt(0)")
        A("s_load_dword s6, s[38:39], 0")
        s.srd(12,38,WSB)
        A("""s_cmp_ge_u32 s3, 14
        s_cbranch_scc1 L_final
        s_cmp_ge_u32 s3, 9
        s_cbranch_scc1 L_hold_bar
        s_cmp_ge_u32 s3, 4
        s_cbranch_scc1 L_stage1
        s_cmp_eq_u32 s3, 3
        s_cbranch_scc1 L_aux""")

    def consumer(s):
        A=s.A
        A("s_sub_u32 s40, s3, 1")
        A("v_lshlrev_b32 v2, 2, v0\nds_write_b32 v2, v1")
        A("""v_and_b32 v8, 15, v0
        v_lshrrev_b32 v9, 4, v0
        v_lshrrev_b32 v10, 1, v8
        v_xor_b32 v10, v10, v9
        v_lshlrev_b32 v10, 4, v10
        v_mad_u32_u24 v4, v8, v11, v10""".replace("v_mad_u32_u24 v4, v8, v11, v10","v_mul_u32_u24 v4, 384, v8\nv_add_u32 v4, v4, v10"))
        A("""v_mul_u32_u24 v5, 768, v9
        v_lshl_add_u32 v5, v8, 4, v5""")
        s.masks(100,10,11)
        A("s_lshl_b32 s47, s40, 2\nv_mov_b32 v3, s47")
        A("s_waitcnt lgkmcnt(0)\ns_barrier")
        A("s_add_u32 s6, s6, 1")
        A(f"""s_mov_b32 s41, 0
        s_mul_i32 s42, s40, {SLOT}
        s_add_u32 s42, s42, {RING}
        s_add_u32 s43, s40, 1
        s_mov_b32 s44, 0
        s_mov_b32 s50, 0""")
        A("L_c_seg:")
        A("s_add_u32 s47, s41, 1")
        s.poll(F_Q,'s47',sleep=2)
        A(f"""s_mul_i32 s47, s41, 384
        v_lshrrev_b32 v9, 4, v0
        v_lshl_add_u32 v2, v9, 4, s47""")
        for j in range(6):
            A(f"ds_read_b128 v[{8+4*j}:{11+4*j}], v2 offset:{QB+64*j}")
        A(f"""s_lshl_b32 s47, s40, 11
        s_add_u32 s47, s47, {SC}
        v_and_b32 v6, 7, v0
        v_lshlrev_b32 v6, 4, v6
        v_bfe_u32 v7, v0, 3, 2
        v_lshl_add_u32 v6, v7, 2, v6
        v_add_u32 v6, s47, v6
        v_lshrrev_b32 v7, 3, v0
        v_lshl_add_u32 v7, v7, 4, s47
        v_mov_b32 v124, 0xff800000
        s_mov_b32 s45, 0""")
        def adv():
            A(f"""s_add_u32 s42, s42, {2*SLOT}
            s_sub_u32 s47, s42, {SLOT*NSLOT}
            s_cmp_ge_u32 s42, {RING+SLOT*NSLOT}
            s_cselect_b32 s42, s47, s42
            s_add_u32 s43, s43, 2
            s_add_u32 s45, s45, 1""")
        A("L_c_k:")
        s.poll(F_LAND,'s43',sleep=s.csleep,cache='s50')
        A("v_add_u32 v125, s42, v4\nv_xor_b32 v126, 64, v125")
        k=0
        for j in range(6):
            for t in range(2):
                A(f"ds_read_b128 v[{32+4*k}:{35+4*k}], v{126 if j&1 else 125} offset:{t*6144+(j>>1)*128}")
                k+=1
        A("s_add_u32 s44, s44, 1\nv_mov_b32 v2, s44")
        k=0
        for j in range(6):
            for t in range(2):
                d=80+4*t
                A(f"s_waitcnt lgkmcnt({11-k})")
                A(f"v_mfma_f32_16x16x32_bf16 v[{d}:{d+3}], v[{8+4*j}:{11+4*j}], v[{32+4*k}:{35+4*k}], {'0' if j==0 else f'v[{d}:{d+3}]'}")
                k+=1
        A(f"ds_write_b32 v3, v2 offset:{F_FREE}")
        adv()
        A(f"""s_nop 0
        v_mov_b32_dpp v80, v84 quad_perm:[0,1,2,3] row_mask:0xa bank_mask:0xf
        v_cvt_pk_bf16_f32 v81, v80, v80
        v_and_b32 v81, 0xffff0000, v81
        v_mul_f32 v81, {SCALE:#x}, v81
        v_cvt_pk_bf16_f32 v81, v81, v81
        v_and_b32 v81, 0xffff0000, v81
        v_max_f32 v124, v124, v81
        ds_write_b32 v6, v81
        v_add_u32 v6, 128, v6
        s_cmp_lt_u32 s45, 16
        s_cbranch_scc1 L_c_k""")
        A(f"""s_lshl_b32 s47, s40, 11
        s_add_u32 s47, s47, {SC}
        v_lshl_add_u32 v6, v0, 4, s47
        ds_read_b128 v[32:35], v6
        ds_read_b128 v[36:39], v6 offset:1024""")
        s.rowred('v_max_f32',124)
        s.swapred('v_max_f32',124,2,16)
        A(f"""s_mov_b32 s47, {LOG2E:#x}
        v_mul_f32 v124, s47, v124
        s_waitcnt lgkmcnt(0)""")
        for i in range(8): A(f"v_fma_f32 v{32+i}, v{32+i}, s47, -v124")
        for i in range(8): A(f"v_exp_f32 v{32+i}, v{32+i}")
        A("""v_add_f32 v40, v32, v33
        v_add_f32 v41, v34, v35
        v_add_f32 v42, v36, v37
        v_add_f32 v43, v38, v39
        v_add_f32 v40, v40, v41
        v_add_f32 v42, v42, v43
        v_add_f32 v45, v40, v42""")
        for i in range(8): A(f"v_cvt_pk_bf16_f32 v{32+i}, v{32+i}, v{32+i}")
        A("ds_write_b128 v6, v[32:35]\nds_write_b128 v6, v[36:39] offset:1024")
        s.rowred('v_add_f32',45)
        s.swapred('v_add_f32',45,2,16)
        s.swapred('v_add_f32',45,2,32)
        A(f"""v_mov_b32 v44, v124
        v_mov_b32 v46, s6
        v_mov_b32 v47, s6
        s_lshl_b32 s48, s41, 5
        s_add_u32 s48, s48, s4
        s_lshl_b32 s48, s48, 8
        s_add_u32 s48, s48, {MLG}
        s_lshl_b32 s47, s5, 1
        s_add_u32 s47, s47, s40
        s_lshl_b32 s47, s47, 4
        s_add_u32 s47, s47, s48
        s_mov_b64 exec, 1
        buffer_store_dwordx4 v[44:47], v1, s[12:15], s47 offen sc1
        s_mov_b64 exec, -1""")
        for i in range(12): A(f"v_mov_b32 v{88+i}, 0")
        A("s_mov_b32 s45, 0")
        A("L_c_v:")
        A("s_cmp_eq_u32 s45, 8\ns_cbranch_scc0 L_c_noml")
        A("""v_and_b32 v125, 15, v0
        v_lshlrev_b32 v125, 4, v125
        L_c_ml:
        buffer_load_dwordx4 v[32:35], v125, s[12:15], s48 offen sc1
        s_waitcnt vmcnt(0)
        v_cmp_ne_u32 vcc, s6, v34
        v_cmp_ne_u32 s[52:53], s6, v35
        s_or_b64 vcc, vcc, s[52:53]
        s_cbranch_scc0 L_c_mlok
        s_sleep 4
        s_sub_u32 s7, s7, 1
        s_cbranch_scc0 L_c_ml
        s_endpgm
        L_c_mlok:
        v_mov_b32 v36, v32""")
        s.rowred('v_max_f32',36)
        A("""v_sub_f32 v32, v32, v36
        v_sub_f32 v37, v124, v36
        v_exp_f32 v32, v32
        v_exp_f32 v37, v37
        v_mul_f32 v33, v33, v32""")
        s.rowred('v_add_f32',33)
        A("""v_rcp_f32 v33, v33
        s_nop 0
        v_mul_f32 v127, v37, v33
        L_c_noml:""")
        s.poll(F_LAND,'s43',sleep=s.csleep,cache='s50')
        A("v_add_u32 v125, s42, v5\nds_read_b128 v[120:123], v7")
        k=0
        for t in range(4):
            for ty in range(3):
                A(f"ds_read_b128 v[{32+4*k}:{35+4*k}], v125 offset:{t*3072+ty*256}")
                k+=1
        A("s_add_u32 s44, s44, 1\nv_mov_b32 v2, s44\nv_add_u32 v7, 128, v7\ns_waitcnt lgkmcnt(12)")
        for t in range(4):
            for r in range(4):
                A(f"v_and_b32 v{104+4*t+r}, v{120+t}, v{100+r}")
        k=0
        for t in range(4):
            for ty in range(3):
                d=88+4*ty
                A(f"s_waitcnt lgkmcnt({11-k})")
                A(f"v_mfma_f32_16x16x32_bf16 v[{d}:{d+3}], v[{32+4*k}:{35+4*k}], v[{104+4*t}:{107+4*t}], v[{d}:{d+3}]")
                k+=1
        A(f"ds_write_b32 v3, v2 offset:{F_FREE}")
        adv()
        A("s_cmp_lt_u32 s45, 16\ns_cbranch_scc1 L_c_v")
        A(f"""s_mul_i32 s47, s41, 1536
        s_mul_i32 s48, s40, 768
        s_add_u32 s47, s47, s48
        s_add_u32 s47, s47, {OB}
        v_bfe_u32 v32, v0, 3, 1
        v_lshrrev_b32 v33, 4, v0
        v_and_b32 v34, 7, v0
        v_lshlrev_b32 v125, 9, v32
        v_lshl_add_u32 v125, v33, 6, v125
        v_lshl_add_u32 v125, v34, 3, v125
        v_add_u32 v125, s47, v125
        v_lshlrev_b32 v32, 9, v32
        v_sub_u32 v126, v125, v32""")
        for r in range(4):
            A(f"v_mov_b32_dpp v{88+r}, v{96+r} quad_perm:[0,1,2,3] row_mask:0xf bank_mask:0xc")
        for r in range(8):
            A(f"v_mul_f32 v{88+r}, v127, v{88+r}")
        A(f"""v_cvt_pk_bf16_f32 v32, v88, v89
        v_cvt_pk_bf16_f32 v33, v90, v91
        v_cvt_pk_bf16_f32 v34, v92, v93
        v_cvt_pk_bf16_f32 v35, v94, v95
        ds_write_b64 v125, v[32:33]
        s_mov_b32 exec_lo, 0x00ff00ff
        s_mov_b32 exec_hi, 0xff00ff00
        ds_write_b64 v126, v[34:35] offset:256
        s_mov_b64 exec, 1
        v_mov_b32 v2, 1
        s_waitcnt lgkmcnt(0)
        ds_add_u32 v1, v2 offset:{F_O}
        s_mov_b64 exec, -1
        s_add_u32 s41, s41, 1
        s_cmp_lt_u32 s41, 2
        s_cbranch_scc1 L_c_seg""")
        s.stamp(4)
        A("s_endpgm")

    def gather8(s, voff, sbase, stride, d0, vt, vtag, sleep=2):
        A=s.A
        l=s.lab('g8'); ok=s.lab('g8ok')
        A(f"{l}:")
        for j in range(8):
            if j*stride<4096:
                A(f"buffer_load_dwordx4 v[{d0+4*j}:{d0+4*j+3}], v{voff}, s[12:15], {sbase} offen offset:{j*stride} sc1")
            else:
                if (j-1)*stride<4096 : A(f"s_add_u32 s49, {sbase}, {j*stride}"); j0=j
                A(f"buffer_load_dwordx4 v[{d0+4*j}:{d0+4*j+3}], v{voff}, s[12:15], s49 offen offset:{(j-j0)*stride} sc1")
        A(f"v_mov_b32 v{vt}, 0")
        for j in range(8):
            A(f"s_waitcnt vmcnt({7-j})")
            for r in range(4):
                A(f"v_bitop3_b32 v{vt}, v{vt}, v{d0+4*j+r}, s6 bitop3:0xf6")
        A(f"""v_and_b32 v{vt}, 0xff, v{vt}
        v_cmp_ne_u32 vcc, 0, v{vt}
        s_cbranch_vccz {ok}
        s_sleep {sleep}
        s_sub_u32 s7, s7, 1
        s_cbranch_scc0 {l}
        s_endpgm
        {ok}:""")
        for i in range(32):
            A(f"v_and_b32 v{d0+i}, 0xffffff00, v{d0+i}")
        for st in (16,8,4):
            for i in range(st):
                A(f"v_add_f32 v{d0+i}, v{d0+i}, v{d0+i+st}")

    def aux(s):
        A=s.A
        A("L_aux:")
        s.srd(8,32,1966080)
        A("""v_min_u32 v4, 47, v0
        v_lshlrev_b32 v5, 4, v4
        v_lshrrev_b32 v6, 3, v4
        v_lshlrev_b32 v6, 6, v6
        v_and_b32 v7, 7, v4
        v_lshl_add_u32 v6, v7, 1, v6""")
        s.masks(100,10,11)
        A("s_waitcnt lgkmcnt(0)\ns_barrier\ns_add_u32 s6, s6, 1\ns_mov_b32 s41, 0")
        s.poll(F_S1,5,sleep=2)
        A("L_a_q:")
        if s.order: A("s_xor_b32 s42, s41, s4\ns_and_b32 s42, s42, 1")
        else: A("s_mov_b32 s42, s41")
        A(f"""s_lshl_b32 s43, s4, 1
        s_add_u32 s42, s42, s43
        s_mul_i32 s42, s42, 6144
        s_add_u32 s42, s42, {QG}""")
        s.gather8(5,'s42',768,8,3,None,sleep=s.asleep)
        A(f"""v_cvt_pk_bf16_f32 v8, v8, v9
        v_cvt_pk_bf16_f32 v10, v10, v11
        ds_write_b16 v6, v8 offset:{QB}
        ds_write_b16_d16_hi v6, v8 offset:{QB+16}
        ds_write_b16 v6, v10 offset:{QB+32}
        ds_write_b16_d16_hi v6, v10 offset:{QB+48}
        s_add_u32 s41, s41, 1
        v_mov_b32 v2, s41
        v_add_u32 v6, 384, v6
        s_waitcnt lgkmcnt(0)
        ds_write_b32 v1, v2 offset:{F_Q}""")
        if s.TS==1:
            A("s_cmp_eq_u32 s41, 1\ns_cbranch_scc0 L_a_ns")
            s.stamp(2)
            A("L_a_ns:")
        A("s_cmp_lt_u32 s41, 2\ns_cbranch_scc1 L_a_q")
        A(f"""v_and_b32 v4, 15, v0
        v_lshrrev_b32 v9, 4, v0
        v_mul_u32_u24 v5, 1280, v9
        v_lshl_add_u32 v5, v4, 4, v5
        v_lshlrev_b32 v6, 30, v9
        v_and_b32 v6, 0x80000000, v6
        v_or_b32 v6, v6, v5
        s_lshl_b32 s42, s4, 3
        s_add_u32 s42, s42, s5
        s_mul_i32 s43, s42, {6*1280}
        s_add_u32 s44, s43, {4*1280}""")
        for c in range(5):
            A(f"buffer_load_dwordx4 v[{40+4*c}:{43+4*c}], v5, s[8:11], s43 offen offset:{256*c} nt")
        for c in range(5):
            A(f"buffer_load_dwordx4 v[{60+4*c}:{63+4*c}], v6, s[8:11], s44 offen offset:{256*c} nt")
        A(f"""v_bfe_u32 v4, v0, 1, 1
        v_lshl_add_u32 v4, v4, 2, v9
        v_min_u32 v4, 5, v4
        s_mul_i32 s45, s5, 6
        v_add_u32 v4, s45, v4
        v_lshrrev_b32 v5, 5, v4
        v_lshlrev_b32 v5, 4, v5
        v_and_b32 v6, 8, v0
        v_add_u32 v5, v5, v6
        v_and_b32 v6, 7, v4
        v_add_u32 v5, v5, v6
        v_lshlrev_b32 v5, 4, v5
        v_and_b32 v6, 1, v0
        v_lshl_add_u32 v5, v6, 9, v5
        v_bfe_u32 v7, v4, 3, 2
        s_lshl_b32 s42, s4, 13
        s_add_u32 s42, s42, {GG}""")
        s.gather8(5,'s42',1024,8,3,None,sleep=s.asleep)
        for r in (1,2,3):
            A(f"v_cmp_eq_u32 vcc, {r}, v7\ns_nop 1\nv_cndmask_b32 v8, v8, v{8+r}, vcc")
        A(f"""v_cvt_pk_bf16_f32 v8, v8, v8
        v_and_b32 v8, 0xffff0000, v8
        v_mul_f32 v9, {f2u(-1.4426950408889634):#x}, v8
        v_exp_f32 v9, v9
        s_nop 0
        v_add_f32 v9, 1.0, v9
        v_rcp_f32 v9, v9
        s_nop 0
        v_cvt_pk_bf16_f32 v9, v9, v9
        v_and_b32 v9, 0xffff0000, v9
        s_nop 1
        v_mov_b32_dpp v10, v9 quad_perm:[0,0,0,0] {DPPF}
        v_mov_b32_dpp v11, v9 quad_perm:[2,2,2,2] {DPPF}
        s_nop 0
        v_mul_f32_dpp v10, v8, v10 quad_perm:[1,1,1,1] {DPPF}
        v_mul_f32_dpp v11, v8, v11 quad_perm:[3,3,3,3] {DPPF}
        v_cvt_pk_bf16_f32 v10, v10, v10
        v_cvt_pk_bf16_f32 v11, v11, v11
        v_cmp_gt_u32 vcc, 32, v0
        s_nop 1
        v_cndmask_b32 v11, 0, v11, vcc""")
        for r in range(4):
            A(f"v_and_b32 v{12+r}, v10, v{100+r}\nv_and_b32 v{16+r}, v11, v{100+r}")
        A("s_waitcnt vmcnt(0)")
        for c in range(5):
            A(f"v_mfma_f32_16x16x32_bf16 v[{80+4*c}:{83+4*c}], v[{40+4*c}:{43+4*c}], v[12:15], 0")
        for c in range(5):
            A(f"v_mfma_f32_16x16x32_bf16 v[{80+4*c}:{83+4*c}], v[{60+4*c}:{63+4*c}], v[16:19], v[{80+4*c}:{83+4*c}]")
        A("v_bfe_u32 v4, v0, 3, 1")
        if s.order: A("s_and_b32 s42, s4, 1\nv_xor_b32 v4, s42, v4")
        A(f"""v_mul_u32_u24 v4, 2560, v4
        v_lshrrev_b32 v5, 5, v0
        v_lshl_add_u32 v4, v5, 8, v4
        v_and_b32 v5, 7, v0
        v_lshl_add_u32 v4, v5, 4, v4
        v_bfe_u32 v5, v0, 4, 1
        v_lshl_add_u32 v4, v5, 3, v4
        v_add_u32 v4, {YL}, v4""")
        for c in range(5):
            d=80+4*c
            A(f"ds_write2_b32 v4, v{d}, v{d+2} offset0:0 offset1:1")
            A(f"ds_write2_b32 v4, v{d+1}, v{d+3} offset0:32 offset1:33")
            if c<4: A("v_add_u32 v4, 512, v4")
        A(f"""v_mov_b32 v2, 1
        s_waitcnt lgkmcnt(0)
        ds_write_b32 v1, v2 offset:{F_Y}""")
        if s.mon: s.monitor()
        A("s_endpgm")

    def monitor(s):
        A=s.A; P=s.per; LS=s.ls; R=s.reps
        A(f"""s_and_b32 s45, s4, {R-1}
        s_mul_i32 s49, s45, {LS}
        s_add_u32 s49, s49, {PG2}
        s_lshr_b32 s43, s4, 2
        s_mul_i32 s43, s43, {4*LS}
        s_add_u32 s43, s43, s49
        s_and_b32 s42, s4, {3-(R-1)}
        s_or_b32 s42, s42, s5
        s_lshl_b32 s44, s6, 8
        ds_read_b32 v2, v1 offset:{F_LAND}
        s_waitcnt lgkmcnt(0)
        v_readfirstlane_b32 s50, v2
        s_add_u32 s41, s50, {P}
        s_and_b32 s41, s41, {~(P-1)&0xffffffff:#x}
        L_m_loop:
        s_cmp_gt_u32 s41, {128-P}
        s_cbranch_scc1 L_m_end
        s_cmp_eq_u32 s42, 0
        s_cbranch_scc0 L_m_nopub""")
        s.poll(F_LAND,'s41',sleep=2,cache='s50')
        A(f"""s_add_u32 s45, s44, s41
        v_mov_b32 v6, s45
        s_mov_b64 exec, 1
        buffer_store_dword v6, v1, s[12:15], s43 offen sc1
        s_mov_b64 exec, -1
        L_m_nopub:""")
        A(f"s_add_u32 s45, s41, {s.rph}")
        s.poll(F_LAND,'s45',sleep=2,cache='s50')
        for i in range(8): A(f"s_load_dword s{72+i}, s[38:39], s49 offset:{i*4*LS} glc")
        A(f"""s_add_u32 s45, s44, s41
        s_add_u32 s45, s45, {s.da}
        s_sub_u32 s46, s41, {s.db}
        s_mov_b32 s47, 0
        s_mov_b32 s48, 0
        s_waitcnt lgkmcnt(0)""")
        for i in range(8):
            A(f"s_sub_u32 s55, s{72+i}, s45\ns_cmp_lt_u32 s55, 128\ns_addc_u32 s47, s47, 0")
            A(f"s_sub_u32 s55, s{72+i}, s44\ns_cmp_lt_u32 s55, s46\ns_addc_u32 s48, s48, 0")
        A(f"""s_cmp_ge_u32 s48, {s.tb}
        s_cselect_b32 s48, 2, 0
        s_cmp_ge_u32 s47, {s.ta}
        s_cselect_b32 s48, 1, s48
        v_mov_b32 v2, s48
        ds_write_b32 v1, v2 offset:{F_MODE}""")
        A(f"""s_add_u32 s41, s41, {P}
        s_branch L_m_loop
        L_m_end:""")

    def stage1(s):
        A=s.A
        A("L_stage1:")
        s.srd(40,16,2560)
        A("""v_bfe_u32 v2, v0, 3, 1
        v_mul_u32_u24 v2, 1280, v2
        v_lshrrev_b32 v116, 4, v0
        v_and_b32 v117, 7, v0
        v_lshl_add_u32 v3, v116, 3, v117
        v_mul_u32_u24 v3, 40, v3
        v_add_u32 v3, v3, v2
        buffer_load_dwordx4 v[4:7], v3, s[40:43], 0 offen
        buffer_load_dwordx4 v[8:11], v3, s[40:43], 0 offen offset:16
        buffer_load_dwordx2 v[12:13], v3, s[40:43], 0 offen offset:32
        v_lshl_add_u32 v2, v116, 2, v2
        s_mul_i32 s44, s5, 160""")
        for Gi in range(10):
            A(f"buffer_load_dword v{14+Gi}, v2, s[40:43], s44 offen offset:{16*Gi}")
        A(f"""s_sub_u32 s45, s3, 4
        s_cmp_eq_u32 s45, 3
        s_cselect_b32 s8, s28, s30
        s_cselect_b32 s9, s29, s31
        s_mul_i32 s46, s4, 96
        s_mul_i32 s47, s4, 384
        s_lshl_b32 s48, s45, 7
        s_add_u32 s47, s47, s48
        s_cmp_lt_u32 s45, 3
        s_cselect_b32 s8, s22, s8
        s_cselect_b32 s9, s23, s9
        s_cselect_b32 s10, 7864320, 1966080
        s_mov_b32 s11, 0x20000
        s_cselect_b32 s46, s47, s46
        s_cselect_b32 s47, 12288, 3072
        s_cselect_b32 s48, 8, 6
        v_lshrrev_b32 v118, 3, v0
        v_mul_lo_u32 v118, v118, s47
        v_lshl_add_u32 v118, v117, 4, v118
        v_cmp_le_u32 vcc, s48, v117
        v_mov_b32 v119, 0x80000000
        s_mul_i32 s48, s5, 80
        s_mul_i32 s48, s48, s47
        v_cndmask_b32 v118, v118, v119, vcc
        s_add_u32 s46, s46, s48
        s_lshl_b32 s47, s47, 3""".replace("s_cselect_b32 s10, 7864320, 1966080","s_mov_b32 s10, 1966080\ns_cselect_b32 s10, 7864320, s10").replace("s_cselect_b32 s47, 12288, 3072","s_movk_i32 s47, 3072\ns_cselect_b32 s47, 12288, s47"))
        for Gi in range(10):
            A(f"buffer_load_dwordx4 v[{24+4*Gi}:{27+4*Gi}], v118, s[8:11], s46 offen nt")
            if Gi<9: A("s_add_u32 s46, s46, s47")
        A("s_barrier")
        s.masks(92,2,3)
        A("v_mov_b32 v2, 0x0c0c0c0c\ns_mov_b32 s48, 0x01000100\ns_mov_b32 s49, 0x03020302")
        for r in range(4):
            A(f"v_bfi_b32 v{84+r}, v{92+r}, s48, v2\nv_bfi_b32 v{88+r}, v{92+r}, s49, v2")
        A("s_waitcnt vmcnt(20)")
        for i in range(10):
            A(f"v_lshlrev_b32 v{64+2*i}, 16, v{4+i}\nv_and_b32 v{65+2*i}, 0xffff0000, v{4+i}")
        for i in range(10): A(f"v_add_f32 v{4+i}, v{64+2*i}, v{65+2*i}")
        for i in range(5): A(f"v_add_f32 v{4+i}, v{4+i}, v{9+i}")
        A("v_add_f32 v4, v4, v5\nv_add_f32 v6, v6, v7\nv_add_f32 v4, v4, v8\nv_add_f32 v4, v4, v6")
        def red32(v,t):
            for c in ("quad_perm:[1,0,3,2]","quad_perm:[2,3,0,1]","row_half_mirror"):
                A(f"s_nop 1\nv_add_f32_dpp v{v}, v{v}, v{v} {c} {DPPF}")
            s.swapred('v_add_f32',v,t,16)
            s.swapred('v_add_f32',v,t,32)
        red32(4,5)
        A(f"v_mul_f32 v4, {f2u(1/640):#x}, v4")
        for i in range(20): A(f"v_sub_f32 v{64+i}, v{64+i}, v4")
        for i in range(4): A(f"v_mul_f32 v{6+i}, v{64+i}, v{64+i}")
        for i in range(4,20): A(f"v_fmac_f32 v{6+i%4}, v{64+i}, v{64+i}")
        A("v_add_f32 v6, v6, v7\nv_add_f32 v8, v8, v9\nv_add_f32 v6, v6, v8")
        red32(6,5)
        A(f"""v_mul_f32 v6, {f2u(1/640):#x}, v6
        v_cvt_pk_bf16_f32 v4, v4, v6
        v_and_b32 v6, 0xffff0000, v4
        v_lshlrev_b32 v4, 16, v4
        v_add_f32 v6, {f2u(1e-5):#x}, v6
        v_cvt_pk_bf16_f32 v6, v6, v6
        v_and_b32 v6, 0xffff0000, v6
        v_sqrt_f32 v6, v6
        s_nop 0
        v_cvt_pk_bf16_f32 v6, v6, v6
        v_and_b32 v6, 0xffff0000, v6
        v_rcp_f32 v6, v6
        s_waitcnt vmcnt(10) lgkmcnt(0)
        s_add_u32 s6, s6, 1""")
        for i in range(10):
            A(f"v_lshlrev_b32 v{64+2*i}, 16, v{14+i}\nv_and_b32 v{65+2*i}, 0xffff0000, v{14+i}")
        for i in range(20): A(f"v_sub_f32 v{64+i}, v{64+i}, v4")
        for i in range(10): A(f"v_cvt_pk_bf16_f32 v{14+i}, v{64+2*i}, v{65+2*i}")
        for i in range(10):
            A(f"v_lshlrev_b32 v{64+2*i}, 16, v{14+i}\nv_and_b32 v{65+2*i}, 0xffff0000, v{14+i}")
        for i in range(20): A(f"v_mul_f32 v{64+i}, v{64+i}, v6")
        for i in range(10): A(f"v_cvt_pk_bf16_f32 v{14+i}, v{64+2*i}, v{65+2*i}")
        for Gi in range(10):
            b=92+8*(Gi&1)
            for r in range(8):
                A(f"v_perm_b32 v{b+r}, v{14+Gi}, v{14+Gi}, v{84+r}")
            if Gi>0:
                pb=92+8*((Gi-1)&1); w=24+4*(Gi-1)
                A(f"s_waitcnt vmcnt({10-Gi})")
                A(f"v_mfma_f32_16x16x32_bf16 v[108:111], v[{w}:{w+3}], v[{pb}:{pb+3}], {'0' if Gi==1 else 'v[108:111]'}")
                A(f"v_mfma_f32_16x16x32_bf16 v[112:115], v[{w}:{w+3}], v[{pb+4}:{pb+7}], {'0' if Gi==1 else 'v[112:115]'}")
        A("s_waitcnt vmcnt(0)")
        A("v_mfma_f32_16x16x32_bf16 v[108:111], v[60:63], v[100:103], v[108:111]")
        A("v_mfma_f32_16x16x32_bf16 v[112:115], v[60:63], v[104:107], v[112:115]")
        A(f"""v_bfe_u32 v2, v0, 3, 1
        v_mul_u32_u24 v2, 6144, v2
        v_lshl_add_u32 v3, v116, 3, v117
        v_lshl_add_u32 v2, v3, 4, v2
        v_lshlrev_b32 v3, 4, v0
        s_mul_i32 s46, s4, 12288
        s_mul_i32 s47, s5, 768
        s_add_u32 s46, s46, s47
        s_lshl_b32 s47, s45, 8
        s_add_u32 s46, s46, s47
        s_add_u32 s46, s46, {QG}
        s_lshl_b32 s47, s4, 3
        s_add_u32 s47, s47, s5
        s_lshl_b32 s47, s47, 1
        s_add_u32 s47, s47, s45
        s_lshl_b32 s47, s47, 9
        s_add_u32 s47, s47, {GG-3*512}
        s_cmp_lt_u32 s45, 3
        s_cselect_b32 s46, s46, s47
        s_cselect_b64 vcc, -1, 0
        v_cndmask_b32 v2, v3, v2, vcc
        v_mov_b32 v3, 0xff""")
        for r in range(4):
            A(f"v_permlane32_swap_b32 v{112+r}, v{4+r}")
        for r in range(4):
            A(f"v_add_f32 v{108+r}, v{108+r}, v{4+r}")
        for r in range(4):
            A(f"v_bfi_b32 v{108+r}, v3, s6, v{108+r}")
        A("""s_mov_b32 exec_hi, 0
        buffer_store_dwordx4 v[108:111], v2, s[12:15], s46 offen sc1
        s_mov_b64 exec, 1
        v_mov_b32 v3, 1
        ds_add_u32 v1, v3 offset:%d
        s_mov_b64 exec, -1"""%F_S1)
        if s.TS:
            A("s_cmp_eq_u32 s3, 4\ns_cbranch_scc0 L_s1_ns")
            s.stamp(6)
            A("L_s1_ns:")
        A("s_branch L_hold")

    def holder(s):
        A=s.A
        A("L_hold_bar:\ns_waitcnt lgkmcnt(0)\ns_barrier\ns_add_u32 s6, s6, 1")
        A("L_hold:")
        s.srd(8,24,7864320)
        A("s_sub_u32 s40, s3, 4")
        s.masks(4,2,3)
        A("""v_lshrrev_b32 v8, 4, v0
        v_bfe_u32 v9, v0, 3, 1
        v_sub_u32 v9, v8, v9
        v_mov_b32 v10, 0x3f803f80""")
        for sidx in range(2):
            A(f"v_cmp_eq_u32 vcc, {2*sidx}, v9\ns_nop 1\nv_cndmask_b32 v11, 0, v10, vcc")
            for r in range(4):
                A(f"v_and_b32 v{20+4*sidx+r}, v11, v{4+r}")
        A(f"""v_and_b32 v3, 3, v0
        v_lshlrev_b32 v3, 2, v3
        v_bfe_u32 v9, v0, 2, 1
        v_add_u32 v3, v3, v9
        v_mul_u32_u24 v3, 2560, v3
        v_lshl_add_u32 v3, v8, 4, v3
        v_and_b32 v9, 8, v0
        v_lshl_add_u32 v3, v9, 3, v3
        s_mul_i32 s41, s4, {192*1280}
        s_lshl_b32 s42, s40, 7
        s_add_u32 s41, s41, s42
        s_mov_b32 s50, 0""")
        A("s_mov_b32 s44, s40")
        A(f"L_h_mod:\ns_cmp_lt_u32 s44, {s.pace}\ns_cbranch_scc1 L_h_modd\ns_sub_u32 s44, s44, {s.pace}\ns_branch L_h_mod\nL_h_modd:")
        A(f"s_add_u32 s44, s44, {s.pace0}")
        F=lambda tile,B: 32+4*(B*4+tile)
        for B in range(6):
            A(f"s_add_u32 s42, s41, {4*1280}")
            for t in range(2):
                for gh in range(2):
                    s.poll(F_LAND, 's44', sleep=8, cache='s50')
                    f=F(2*t+gh,B)
                    if not s.nowo: A(f"buffer_load_dwordx4 v[{f}:{f+3}], v3, s[8:11], {'s42' if gh else 's41'} offen offset:{1280*t} nt")
                    A(f"s_add_u32 s44, s44, {s.pace}")
            A(f"s_add_u32 s41, s41, {32*1280}\ns_waitcnt vmcnt(0)")
            for t in range(2):
                f0=F(2*t,B); f1=F(2*t+1,B)
                A(f"v_mfma_f32_16x16x32_bf16 v[4:7], v[{f0}:{f0+3}], v[20:23], 0")
                A(f"v_mfma_f32_16x16x32_bf16 v[8:11], v[{f1}:{f1+3}], v[20:23], 0")
                A(f"v_mfma_f32_16x16x32_bf16 v[12:15], v[{f0}:{f0+3}], v[24:27], 0")
                A(f"v_mfma_f32_16x16x32_bf16 v[16:19], v[{f1}:{f1+3}], v[24:27], 0")
                A("s_nop 7")
                for sidx in range(2):
                    for gh in range(2):
                        tile=2*gh+sidx
                        if t==0 and tile>=2: dst=28+2*(tile-2)
                        else: dst=F(tile,B)+2*t
                        src=4+8*sidx+4*gh
                        A(f"v_cvt_pk_bf16_f32 v{dst}, v{src}, v{src+1}\nv_cvt_pk_bf16_f32 v{dst+1}, v{src+2}, v{src+3}")
            for i in range(2):
                A(f"v_mov_b32 v{F(2,B)+i}, v{28+i}\nv_mov_b32 v{F(3,B)+i}, v{30+i}")
            A("s_nop 1")
            for sidx in range(2):
                for i in range(4):
                    A(f"v_permlane32_swap_b32 v{F(sidx,B)+i}, v{F(2+sidx,B)+i}")
        s.poll(F_Y, 1, sleep=8)
        A(f"""v_and_b32 v3, 3, v0
        v_mul_u32_u24 v3, 384, v3
        v_lshrrev_b32 v2, 4, v0
        v_lshl_add_u32 v3, v2, 4, v3
        v_and_b32 v0, 15, v0
        v_lshlrev_b32 v0, 4, v0
        s_mov_b32 s41, 0
        s_lshl_b32 s42, s40, 8
        s_lshl_b32 s43, s4, 3
        s_add_u32 s43, s43, s5
        s_mul_i32 s43, s43, 2560
        s_add_u32 s43, s43, s42
        s_add_u32 s43, s43, {YG}
        s_add_u32 s42, s42, {YL}
        s_mov_b32 s44, 62
        s_mov_b32 s45, 2""")
        A("L_h_seg:")
        A("v_add_u32 v2, s42, v0\nds_read_b128 v[20:23], v2")
        for t in range(4):
            for r in range(1,4): A(f"v_mov_b32 v{4+4*t+r}, 0")
        A("s_waitcnt lgkmcnt(0)")
        for t in range(4): A(f"v_mov_b32 v{4+4*t}, v{20+t}")
        s.poll(F_LAND,'s44',sleep=16,cache='s50')
        s.poll(F_O,'s45',sleep=1)
        for B in range(3):
            A(f"ds_read_b128 v[{20+4*B}:{23+4*B}], v3 offset:{OB+64*B}")
        for B in range(6):
            a=20+4*(B%3)
            A(f"s_waitcnt lgkmcnt({2 if B<4 else 5-B})")
            for t in range(4):
                f=F(t,B)
                A(f"v_mfma_f32_16x16x32_bf16 v[{4+4*t}:{7+4*t}], v[{a}:{a+3}], v[{f}:{f+3}], v[{4+4*t}:{7+4*t}]")
            if B<3: A(f"ds_read_b128 v[{a}:{a+3}], v3 offset:{OB+64*(B+3)}")
        A("v_mov_b32 v2, 0xff\ns_nop 3")
        for t in range(4):
            d=4+4*t
            A(f"v_add_f32 v{d}, v{d}, v{d+1}\nv_add_f32 v{d+2}, v{d+2}, v{d+3}")
        for t in range(4):
            d=4+4*t
            A(f"v_add_f32 v{20+t}, v{d}, v{d+2}")
        for t in range(4):
            A(f"v_bfi_b32 v{20+t}, v2, s6, v{20+t}")
        if s.ydef: s.poll(F_LAND, s.ydef, sleep=8, cache='s50')
        A(f"""s_mov_b64 exec, 0xffff
        buffer_store_dwordx4 v[20:23], v0, s[12:15], s43 offen sc1
        s_mov_b64 exec, -1
        v_add_u32 v3, 1536, v3
        s_add_u32 s42, s42, 2560
        s_add_u32 s43, s43, {256*2560}
        s_add_u32 s44, s44, 64
        s_add_u32 s45, s45, 2
        s_add_u32 s41, s41, 1
        s_cmp_lt_u32 s41, 2
        s_cbranch_scc1 L_h_seg""")
        if s.TS:
            A("s_cmp_eq_u32 s3, 4\ns_cbranch_scc0 L_h_ns")
            s.stamp(5)
            A("s_cmp_ge_u32 s2, 80\ns_cbranch_scc0 L_h_ns")
            s.stamp(1)
            A("L_h_ns:")
        A("s_endpgm")

    def final(s):
        A=s.A
        A("L_final:\ns_waitcnt lgkmcnt(0)\ns_barrier")
        A("s_cmp_ge_u32 s2, 80\ns_cbranch_scc1 L_end")
        A("s_add_u32 s6, s6, 1")
        s.srd(40,16,2560)
        s.srd(8,34,2560)
        A(f"""s_and_b32 s44, s2, 7
        s_mul_i32 s44, s44, 10
        s_lshr_b32 s45, s2, 3
        s_add_u32 s44, s44, s45
        s_lshl_b32 s44, s44, 1
        s_add_u32 s44, s44, s3
        s_sub_u32 s44, s44, 14
        s_cmp_ge_u32 s44, 80
        s_cselect_b32 s45, 1, 0
        s_cselect_b32 s46, 80, 0
        s_sub_u32 s44, s44, s46""")
        A(f"""s_lshr_b32 s46, s44, 3
        s_lshl_b32 s46, s46, 7
        s_and_b32 s47, s44, 7
        s_lshl_b32 s47, s47, 2
        s_add_u32 s46, s46, s47
        s_mul_i32 s47, s45, 1280
        s_add_u32 s46, s46, s47
        v_bfe_u32 v4, v0, 4, 1
        v_lshlrev_b32 v4, 6, v4
        v_lshrrev_b32 v5, 5, v0
        v_lshl_add_u32 v4, v5, 5, v4
        v_and_b32 v5, 1, v0
        v_lshl_add_u32 v4, v5, 1, v4
        v_add_u32 v4, s46, v4
        buffer_load_ushort v6, v4, s[40:43], 0 offen
        v_lshrrev_b32 v7, 4, v0
        v_lshlrev_b32 v7, 4, v7
        v_bfe_u32 v3, v0, 1, 3
        v_add_u32 v7, v7, v3
        v_mul_u32_u24 v7, 2560, v7
        v_lshl_add_u32 v7, v5, 4, v7
        s_lshl_b32 s44, s44, 5
        s_add_u32 s44, s44, {YG}
        s_mov_b32 s47, 0
        s_mov_b32 s48, {s.fin0}
        s_mov_b32 s49, 2
        s_mov_b32 s50, 0""")
        for r in range(4): A(f"v_mov_b32 v{24+r}, 0")
        A("L_f_seg:")
        if s.order:
            A(f"s_xor_b32 s51, s45, s47\ns_mul_i32 s51, s51, {8*2560}\ns_add_u32 s51, s51, s44")
        else:
            raise NotImplementedError
        for j in range(1,4): A(f"s_add_u32 s{51+j}, s51, {j*64*2560}")
        for j in range(4): A(f"s_mov_b64 s[{56+2*j}:{57+2*j}], -1")
        s.poll(F_LAND,'s48',sleep=16,cache='s50')
        s.poll(F_O,'s49',sleep=2)
        A("L_f_poll:")
        for j in range(4):
            A(f"""s_mov_b64 exec, s[{56+2*j}:{57+2*j}]
            s_cbranch_execz L_f_sk{j}
            buffer_load_dwordx4 v[{8+4*j}:{11+4*j}], v7, s[12:15], s{51+j} offen sc1
            L_f_sk{j}:""")
        A("s_mov_b64 exec, -1\ns_waitcnt vmcnt(0)")
        for j in range(4):
            d=8+4*j
            A(f"""v_xor_b32 v{28+j}, s6, v{d}
            v_bitop3_b32 v{28+j}, v{28+j}, v{d+1}, s6 bitop3:0xf6
            v_bitop3_b32 v{28+j}, v{28+j}, v{d+2}, s6 bitop3:0xf6
            v_bitop3_b32 v{28+j}, v{28+j}, v{d+3}, s6 bitop3:0xf6""")
        A("s_nop 0")
        for j in range(4):
            A(f"v_or_b32_dpp v{28+j}, v{28+j}, v{28+j} quad_perm:[1,0,3,2] {DPPF}")
        for j in range(4):
            A(f"v_and_b32 v{28+j}, 0xff, v{28+j}")
        for j in range(4):
            A(f"v_cmp_ne_u32 s[{56+2*j}:{57+2*j}], 0, v{28+j}")
        A("""s_or_b64 s[64:65], s[56:57], s[58:59]
        s_or_b64 s[66:67], s[60:61], s[62:63]
        s_or_b64 s[64:65], s[64:65], s[66:67]
        s_cbranch_scc0 L_f_ok
        s_sleep 1
        s_sub_u32 s7, s7, 1
        s_cbranch_scc0 L_f_poll
        s_endpgm
        L_f_ok:""")
        for i in range(16): A(f"v_and_b32 v{8+i}, 0xffffff00, v{8+i}")
        for i in range(8): A(f"v_add_f32 v{8+i}, v{8+i}, v{16+i}")
        for i in range(4): A(f"v_add_f32 v{24+i}, v{24+i}, v{12+i}")
        for i in range(4): A(f"v_add_f32 v{24+i}, v{24+i}, v{8+i}")
        A(f"""s_add_u32 s44, s44, {256*2560}
        s_mov_b32 s48, 126
        s_add_u32 s49, s49, 2
        s_add_u32 s47, s47, 1
        s_cmp_lt_u32 s47, 2
        s_cbranch_scc1 L_f_seg
        v_permlane32_swap_b32 v24, v25
        v_permlane32_swap_b32 v26, v27
        v_add_f32 v24, v24, v25
        v_add_f32 v26, v26, v27
        v_lshlrev_b32 v6, 16, v6
        s_nop 0
        v_permlane16_swap_b32 v24, v26
        v_add_f32 v24, v24, v26""")
        for c in ("quad_perm:[2,3,0,1]","row_ror:4","row_ror:8"):
            A(f"s_nop 1\nv_add_f32_dpp v24, v24, v24 {c} {DPPF}")
        A("""v_add_f32 v24, v24, v6
        v_cvt_pk_bf16_f32 v24, v24, v24
        s_mov_b32 exec_lo, 0x00030003
        s_mov_b32 exec_hi, 0x00030003
        buffer_store_short v24, v4, s[8:11], 0 offen
        s_mov_b64 exec, 1
        s_cmp_eq_u32 s2, 0
        s_cbranch_scc0 L_f_noep
        s_cmp_eq_u32 s3, 14
        s_cbranch_scc0 L_f_noep
        v_mov_b32 v2, s6
        buffer_store_dword v2, v1, s[12:15], 0 offen
        L_f_noep:
        s_mov_b64 exec, -1""")
        if s.TS:
            A("s_cmp_eq_u32 s3, 14\ns_cbranch_scc0 L_end")
            s.stamp(1)
        A("L_end:")

    def build(s):
        s.prologue(); s.loader(); s.common2(); s.consumer(); s.aux(); s.stage1(); s.holder(); s.final()
        errs=hazard.check(s.L)
        for e in errs: print(e)
        if errs: raise SystemExit("hazards")
        return "\n".join(("    "+l if not l.endswith(':') else l) for l in s.L)

HEADER=open('parallel_sum__gqa_block_cached__glu_gated_glu__decode.s.ref').read().split('; Override launch')[0]
def full(body):
    return HEADER+f"; @launch grid=(256,1,1) block=(1024,1,1) lds={LDS_BYTES}\n"+wrap(NAME,body,128,128,sgpr=96)

if __name__=="__main__":
    if len(sys.argv)>1 and sys.argv[1]=='bench':
        cfgs=eval(sys.argv[2]); args=[]; files=[]
        for c in cfgs:
            nm="k_"+"_".join(f"{k}{v}" for k,v in c.items())
            body=G(**c).build()
            build(nm,NAME,wrap(NAME,body,128,128,sgpr=96),128,1024,sgpr=96)
            args+=[f"work/{nm}.co",NAME,"256","1024",str(LDS_BYTES)]; files.append(f"work/{nm}.co")
        open('last_args.txt','w').write(" ".join(args))
        import json; print(json.dumps(["work/bench","work/last_args.txt"]+files))
    else:
        kw=eval(sys.argv[2]) if len(sys.argv)>2 else {}
        out=sys.argv[1] if len(sys.argv)>1 else 'parallel_sum__gqa_block_cached__glu_gated_glu__decode.s'
        open(out,'w').write(full(G(**kw).build()))
        print("written",out)
```

```python
import sys, struct
from common import *
import hazard

NAME="parallel_sum__gqa_block_cached__glu_gated_glu__decode_kernel"
KVB=201326592; BST=100663296; HST=3145728
F_LAND=0; F_FREE=4; F_Q=12; F_O=16; F_Y=20; F_S1=24; F_MODE=28
QB=256; OB=1024; SC=4096; YL=8192; RING=16384; SLOT=12288; NSLOT=12
LDS_BYTES=RING+SLOT*NSLOT
MLG=4096; PG=20480; QG=32768; GG=425984; YG=688128; WSB=2097152; PG2=2031616
def f2u(x): return struct.unpack('<I',struct.pack('<f',x))[0]
SCALE=f2u(192**-0.5); LOG2E=f2u(1.4426950408889634)
DPPF="row_mask:0xf bank_mask:0xf"

class G:
    def __init__(s, N=21, TS=0, rot=1, order=1, pace0=12, pace=2, fin0=90, asleep=4, NT=None, tailn=0, noswz=0, nowo=0, csleep=1, nofree=0, prio=3, mon=0, NH=30, NL=16, tg=3, ta=3, tb=3, per=4, oth=0, mst='sc1', rph=2, fl=1, ls=1152, reps=1, da=1, db=0, ydef=0, nogl=0, DBG=0):
        s.DBG=DBG
        s.reps=reps; s.da=da; s.db=db; s.ydef=ydef; s.nogl=nogl
        s.fl=fl; s.ls=ls
        s.oth=oth; s.mst=mst; s.rph=rph
        s.mon=mon; s.NH=NH; s.NL=NL; s.tg=tg; s.ta=ta; s.tb=tb; s.per=per
        s.noswz=noswz; s.nowo=nowo; s.csleep=csleep; s.nofree=nofree; s.prio=prio
        s.L=[]; s.N=N; s.TS=TS; s.rot=rot; s.order=order; s.uid=0; s.pace0=pace0; s.pace=pace; s.fin0=fin0; s.asleep=asleep
        s.NT=NT; s.tailn=tailn
    def A(s,x):
        for l in x.split('\n'):
            l=l.strip()
            if l: s.L.append(l)
    def lab(s,p):
        s.uid+=1; return f"L_{p}_{s.uid}"
    def stamp(s,slot,mode=1):
        if not s.TS: return
        if slot in (2,4,5,6) and mode!=s.TS: return
        if s.DBG:
            l=s.lab('ts')
            s.A(f"""s_memrealtime s[90:91]
            s_cmp_eq_u32 s2, 0
            s_cselect_b32 s92, {slot*4}, {32+slot*4}
            s_cbranch_scc1 {l}a
            s_cmp_eq_u32 s2, 77
            s_cbranch_scc0 {l}
            {l}a:
            s_waitcnt lgkmcnt(0)
            s_sub_u32 s91, s90, s88
            v_mov_b32 v2, s92
            v_mov_b32 v3, s91
            global_store_dword v2, v3, s[36:37]
            {l}:
            s_waitcnt lgkmcnt(0)""")
            return
        s.A(f"""s_memrealtime s[90:91]
        s_add_u32 s92, s38, 0x20000000
        s_addc_u32 s93, s39, 0
        s_lshl_b32 s94, s2, 6
        s_add_u32 s92, s92, s94
        s_addc_u32 s93, s93, 0
        s_waitcnt lgkmcnt(0)
        v_mov_b32 v2, s90
        v_mov_b32 v3, s91
        global_store_dwordx2 v1, v[2:3], s[92:93] offset:{slot*8}""")
    def poll(s, off, need, sleep=1, cache=None, tmp='s46', vaddr='v1'):
        l=s.lab('pl'); d=s.lab('pd')
        if cache:
            s.A(f"s_cmp_ge_u32 {cache}, {need}\ns_cbranch_scc1 {d}")
            tmp=cache
        s.A(f"""{l}:
        ds_read_b32 v2, {vaddr} offset:{off}
        s_waitcnt lgkmcnt(0)
        v_readfirstlane_b32 {tmp}, v2
        s_cmp_ge_u32 {tmp}, {need}
        s_cbranch_scc1 {d}
        s_sleep {sleep}
        s_sub_u32 s7, s7, 1
        s_cbranch_scc0 {l}
        s_endpgm
        {d}:""")
    def masks(s, m0, t0, t1):
        s.A(f"""v_and_b32 v{t0}, 1, v0
        v_lshlrev_b32 v{t0}, 4, v{t0}
        v_mov_b32 v{t1}, 0xffff
        v_lshlrev_b32 v{t0}, v{t0}, v{t1}
        v_bfe_u32 v{t1}, v0, 1, 2""")
        for r in range(4):
            s.A(f"v_cmp_eq_u32 vcc, {r}, v{t1}\ns_nop 1\nv_cndmask_b32 v{m0+r}, 0, v{t0}, vcc")
    def rowred(s, op, v, t=None):
        for c in ("quad_perm:[1,0,3,2]","quad_perm:[2,3,0,1]","row_half_mirror","row_mirror"):
            s.A(f"s_nop 1\n{op}_dpp v{v}, v{v}, v{v} {c} {DPPF}")
    def swapred(s, op, v, t, which):
        s.A(f"""v_mov_b32 v{t}, v{v}
        s_nop 1
        v_permlane{which}_swap_b32 v{v}, v{t}
        {op} v{v}, v{v}, v{t}""")
    def srd(s, d, ptr, size):
        s.A(f"s_mov_b32 s{d}, s{ptr}\ns_mov_b32 s{d+1}, s{ptr+1}\ns_mov_b32 s{d+2}, {size}\ns_mov_b32 s{d+3}, 0x20000")

    def prologue(s):
        A=s.A
        if s.TS: A("s_memrealtime s[88:89]")
        A("""s_load_dwordx16 s[16:31], s[0:1], 0
        s_load_dwordx8 s[32:39], s[0:1], 64
        s_cmp_ge_u32 s2, 256
        s_cbranch_scc1 L_end
        v_lshrrev_b32 v1, 6, v0
        v_and_b32 v0, 63, v0
        v_readfirstlane_b32 s3, v1
        s_and_b32 s4, s2, 7
        s_lshr_b32 s5, s2, 3
        s_lshr_b32 s6, s5, 3
        s_lshl_b32 s4, s4, 2
        s_add_u32 s4, s4, s6
        s_and_b32 s5, s5, 7
        s_mov_b32 s7, 0x400000
        v_mov_b32 v1, 0
        s_cmp_eq_u32 s3, 0
        s_cbranch_scc0 L_notloader""")

    def loader(s):
        A=s.A; N=s.N
        A(f"s_setprio {s.prio}")
        A("""v_lshrrev_b32 v4, 3, v0
        v_and_b32 v5, 7, v0
        v_lshlrev_b32 v6, 7, v4
        v_lshlrev_b32 v9, 4, v0""")
        for k in range(6):
            A(f"""v_add_u32 v7, {8*k}, v4
            v_mul_u32_u24 v7, 43, v7
            v_lshrrev_b32 v7, 8, v7
            {'v_mov_b32 v7, v5' if s.noswz else 'v_xor_b32 v7, v7, v5'}
            v_lshl_add_u32 v{10+k}, v7, 4, v6""")
        A("s_mul_i32 s40, s4, %d"%HST)
        A("s_mov_b32 s41, 0")
        A(f"s_mov_b32 s42, {RING}")
        A("s_mov_b32 s43, 0")
        A("s_mov_b32 s50, 0\ns_mov_b32 s51, 0\ns_mov_b32 s52, 0\ns_mov_b32 s53, 0\ns_mov_b32 s54, 0")
        A("s_waitcnt lgkmcnt(0)")
        A(f"s_mov_b32 s10, {KVB}\ns_mov_b32 s11, 0x20000")
        s.stamp(0)
        if s.TS and not s.DBG:
            A("v_mov_b32 v2, s88\nv_mov_b32 v3, s89\nglobal_store_dwordx2 v1, v[2:3], s[92:93]")
        A("L_ld_phase:")
        if s.TS==2:
            A("v_mov_b32 v30, v3")
            for ph,sl in enumerate((2,4,5,6)):
                A(f"s_cmp_eq_u32 s43, {ph}\ns_cbranch_scc0 L_ld_st{ph}")
                A("s_waitcnt lgkmcnt(0)\nv_mov_b32 v30, v3")
                s.stamp(sl,2)
                A(f"v_mov_b32 v3, v30\nL_ld_st{ph}:")
        A("s_lshr_b32 s44, s43, 1")
        if s.order: A("s_xor_b32 s44, s44, s4")
        A(f"""s_and_b32 s44, s44, 1
        s_mul_i32 s44, s44, {BST}
        s_add_u32 s44, s44, s40
        s_and_b32 s45, s43, 1
        s_cselect_b32 s8, s20, s18
        s_cselect_b32 s9, s21, s19
        s_cselect_b64 vcc, -1, 0""")
        for k in range(6):
            A(f"v_cndmask_b32 v{20+k}, v{10+k}, v9, vcc")
        A("s_mov_b32 s45, 0")
        A("L_ld_chunk:")
        A(f"""s_lshr_b32 s47, s41, 1
        s_sub_u32 s47, s47, {NSLOT//2-1 if not s.nofree else 1000}
        s_cbranch_scc1 L_ld_go
        s_waitcnt lgkmcnt(0)
        v_readfirstlane_b32 s50, v3
        v_readfirstlane_b32 s52, v5
        s_cmp_ge_u32 s50, s47
        s_cbranch_scc1 L_ld_go
        s_waitcnt vmcnt(0)
        s_mov_b32 s51, s41
        v_mov_b32 v2, s41
        ds_write_b32 v1, v2 offset:{F_LAND}""")
        s.poll(F_FREE, 's47', sleep=1, vaddr='v4')
        A("L_ld_go:")
        if s.rot:
            A("s_add_u32 s46, s45, s5\ns_and_b32 s46, s46, 7")
        else:
            A("s_mov_b32 s46, s5")
        A(f"""s_lshl_b32 s47, s45, 3
        s_add_u32 s46, s46, s47
        s_mul_i32 s46, s46, {SLOT}
        s_add_u32 s46, s46, s44""")
        def body(N, tag):
            pubk=(N-1)%12; pubd=(N-1-pubk)//12
            for k in range(12):
                if k%4==0:
                    A(f"s_add_u32 m0, s42, {k*1024}\ns_add_u32 s47, s46, {k*1024}")
                A(f"s_waitcnt vmcnt({N-1})")
                if k==pubk:
                    A(f"""s_sub_u32 s48, s41, {pubd}
                    s_max_i32 s51, s51, s48
                    v_mov_b32 v2, s51
                    ds_write_b32 v1, v2 offset:{F_LAND}""")
                A(f"buffer_load_dwordx4 v{20+k%6}, s[8:11], s47 offen offset:{(k%4)*1024} nt lds")
                if k==6 and tag=='':
                    A("""s_cmp_eq_u32 s41, 1
                    s_cbranch_scc0 L_ld_nobar
                    s_barrier
                    L_ld_nobar:""")
                if k==9:
                    A(f"""s_and_b32 s48, s41, 1
                    s_xor_b32 s48, s48, 1
                    s_lshl_b32 s48, s48, 2
                    v_mov_b32 v4, s48
                    ds_read_b32 v3, v4 offset:{F_FREE}""")
                    if s.mon: A(f"ds_read_b32 v5, v1 offset:{F_MODE}")
        assert N>=13
        if s.tailn:
            A(f"s_cmp_ge_u32 s41, {128-s.tailn}\ns_cbranch_scc1 L_ld_tail")
        if s.mon:
            A("s_cmp_eq_u32 s52, 1\ns_cbranch_scc1 L_ld_hi\ns_cmp_eq_u32 s52, 2\ns_cbranch_scc1 L_ld_lo")
        body(N,'')
        if s.tailn:
            A("s_branch L_ld_next\nL_ld_tail:")
            body(s.NT,'t')
        if s.mon:
            A("s_branch L_ld_next\nL_ld_hi:")
            if s.TS: A("s_add_u32 s53, s53, 1")
            body(s.NH,'h')
            A("s_branch L_ld_next\nL_ld_lo:")
            if s.TS: A("s_add_u32 s54, s54, 1")
            body(s.NL,'l')
        A("L_ld_next:")
        A(f"""s_add_u32 s42, s42, {SLOT}
        s_cmp_ge_u32 s42, {RING+SLOT*NSLOT}
        s_cselect_b32 s42, {RING}, s42
        s_add_u32 s41, s41, 1
        s_add_u32 s45, s45, 1
        s_cmp_lt_u32 s45, 32
        s_cbranch_scc1 L_ld_chunk
        s_add_u32 s43, s43, 1
        s_cmp_lt_u32 s43, 4
        s_cbranch_scc1 L_ld_phase""")
        NE = max(s.NT if s.tailn else N, s.NH if s.mon else N)
        for x in range((NE-1)//12,-1,-1):
            A(f"s_max_i32 s51, s51, {128-x}\nv_mov_b32 v2, s51\ns_waitcnt vmcnt({12*x})\nds_write_b32 v1, v2 offset:{F_LAND}")
        s.stamp(3)
        if s.TS and not s.DBG:
            A("s_getreg_b32 s90, hwreg(HW_REG_XCC_ID)\ns_lshl_b32 s53, s53, 8\ns_lshl_b32 s54, s54, 16\ns_and_b32 s90, s90, 15\ns_or_b32 s90, s90, s53\ns_or_b32 s90, s90, s54\nv_mov_b32 v2, s90\nv_mov_b32 v3, 0\nglobal_store_dwordx2 v1, v[2:3], s[92:93] offset:56")
        A("s_endpgm")

    def common2(s):
        A=s.A
        A("L_notloader:")
        A("s_waitcnt lgkmcnt(0)")
        A("s_load_dword s6, s[38:39], 0")
        s.srd(12,38,WSB)
        A("""s_cmp_ge_u32 s3, 14
        s_cbranch_scc1 L_final
        s_cmp_ge_u32 s3, 9
        s_cbranch_scc1 L_hold_bar
        s_cmp_ge_u32 s3, 4
        s_cbranch_scc1 L_stage1
        s_cmp_eq_u32 s3, 3
        s_cbranch_scc1 L_aux""")

    def consumer(s):
        A=s.A
        A("s_sub_u32 s40, s3, 1")
        A("v_lshlrev_b32 v2, 2, v0\nds_write_b32 v2, v1")
        A("""v_and_b32 v8, 15, v0
        v_lshrrev_b32 v9, 4, v0
        v_lshrrev_b32 v10, 1, v8
        v_xor_b32 v10, v10, v9
        v_lshlrev_b32 v10, 4, v10
        v_mad_u32_u24 v4, v8, v11, v10""".replace("v_mad_u32_u24 v4, v8, v11, v10","v_mul_u32_u24 v4, 384, v8\nv_add_u32 v4, v4, v10"))
        A("""v_mul_u32_u24 v5, 768, v9
        v_lshl_add_u32 v5, v8, 4, v5""")
        s.masks(100,10,11)
        A("s_lshl_b32 s47, s40, 2\nv_mov_b32 v3, s47")
        A("s_waitcnt lgkmcnt(0)\ns_barrier")
        A("s_add_u32 s6, s6, 1")
        A(f"""s_mov_b32 s41, 0
        s_mul_i32 s42, s40, {SLOT}
        s_add_u32 s42, s42, {RING}
        s_add_u32 s43, s40, 1
        s_mov_b32 s44, 0
        s_mov_b32 s50, 0""")
        A("L_c_seg:")
        A("s_add_u32 s47, s41, 1")
        s.poll(F_Q,'s47',sleep=2)
        A(f"""s_mul_i32 s47, s41, 384
        v_lshrrev_b32 v9, 4, v0
        v_lshl_add_u32 v2, v9, 4, s47""")
        for j in range(6):
            A(f"ds_read_b128 v[{8+4*j}:{11+4*j}], v2 offset:{QB+64*j}")
        A(f"""s_lshl_b32 s47, s40, 11
        s_add_u32 s47, s47, {SC}
        v_and_b32 v6, 7, v0
        v_lshlrev_b32 v6, 4, v6
        v_bfe_u32 v7, v0, 3, 2
        v_lshl_add_u32 v6, v7, 2, v6
        v_add_u32 v6, s47, v6
        v_lshrrev_b32 v7, 3, v0
        v_lshl_add_u32 v7, v7, 4, s47
        v_mov_b32 v124, 0xff800000
        s_mov_b32 s45, 0""")
        def adv():
            A(f"""s_add_u32 s42, s42, {2*SLOT}
            s_sub_u32 s47, s42, {SLOT*NSLOT}
            s_cmp_ge_u32 s42, {RING+SLOT*NSLOT}
            s_cselect_b32 s42, s47, s42
            s_add_u32 s43, s43, 2
            s_add_u32 s45, s45, 1""")
        A("L_c_k:")
        s.poll(F_LAND,'s43',sleep=s.csleep,cache='s50')
        A("v_add_u32 v125, s42, v4\nv_xor_b32 v126, 64, v125")
        k=0
        for j in range(6):
            for t in range(2):
                A(f"ds_read_b128 v[{32+4*k}:{35+4*k}], v{126 if j&1 else 125} offset:{t*6144+(j>>1)*128}")
                k+=1
        A("s_add_u32 s44, s44, 1\nv_mov_b32 v2, s44")
        k=0
        for j in range(6):
            for t in range(2):
                d=80+4*t
                A(f"s_waitcnt lgkmcnt({11-k})")
                A(f"v_mfma_f32_16x16x32_bf16 v[{d}:{d+3}], v[{8+4*j}:{11+4*j}], v[{32+4*k}:{35+4*k}], {'0' if j==0 else f'v[{d}:{d+3}]'}")
                k+=1
        A(f"ds_write_b32 v3, v2 offset:{F_FREE}")
        adv()
        A(f"""s_nop 0
        v_mov_b32_dpp v80, v84 quad_perm:[0,1,2,3] row_mask:0xa bank_mask:0xf
        v_cvt_pk_bf16_f32 v81, v80, v80
        v_and_b32 v81, 0xffff0000, v81
        v_mul_f32 v81, {SCALE:#x}, v81
        v_cvt_pk_bf16_f32 v81, v81, v81
        v_and_b32 v81, 0xffff0000, v81
        v_max_f32 v124, v124, v81
        ds_write_b32 v6, v81
        v_add_u32 v6, 128, v6
        s_cmp_lt_u32 s45, 16
        s_cbranch_scc1 L_c_k""")
        A(f"""s_lshl_b32 s47, s40, 11
        s_add_u32 s47, s47, {SC}
        v_lshl_add_u32 v6, v0, 4, s47
        ds_read_b128 v[32:35], v6
        ds_read_b128 v[36:39], v6 offset:1024""")
        s.rowred('v_max_f32',124)
        s.swapred('v_max_f32',124,2,16)
        A(f"""s_mov_b32 s47, {LOG2E:#x}
        v_mul_f32 v124, s47, v124
        s_waitcnt lgkmcnt(0)""")
        for i in range(8): A(f"v_fma_f32 v{32+i}, v{32+i}, s47, -v124")
        for i in range(8): A(f"v_exp_f32 v{32+i}, v{32+i}")
        A("""v_add_f32 v40, v32, v33
        v_add_f32 v41, v34, v35
        v_add_f32 v42, v36, v37
        v_add_f32 v43, v38, v39
        v_add_f32 v40, v40, v41
        v_add_f32 v42, v42, v43
        v_add_f32 v45, v40, v42""")
        for i in range(8): A(f"v_cvt_pk_bf16_f32 v{32+i}, v{32+i}, v{32+i}")
        A("ds_write_b128 v6, v[32:35]\nds_write_b128 v6, v[36:39] offset:1024")
        s.rowred('v_add_f32',45)
        s.swapred('v_add_f32',45,2,16)
        s.swapred('v_add_f32',45,2,32)
        A(f"""v_mov_b32 v44, v124
        v_mov_b32 v46, s6
        v_mov_b32 v47, s6
        s_lshl_b32 s48, s41, 5
        s_add_u32 s48, s48, s4
        s_lshl_b32 s48, s48, 8
        s_add_u32 s48, s48, {MLG}
        s_lshl_b32 s47, s5, 1
        s_add_u32 s47, s47, s40
        s_lshl_b32 s47, s47, 4
        s_add_u32 s47, s47, s48
        s_mov_b64 exec, 1
        buffer_store_dwordx4 v[44:47], v1, s[12:15], s47 offen sc1
        s_mov_b64 exec, -1""")
        for i in range(12): A(f"v_mov_b32 v{88+i}, 0")
        A("s_mov_b32 s45, 0")
        A("L_c_v:")
        A("s_cmp_eq_u32 s45, 8\ns_cbranch_scc0 L_c_noml")
        A("""v_and_b32 v125, 15, v0
        v_lshlrev_b32 v125, 4, v125
        L_c_ml:
        buffer_load_dwordx4 v[32:35], v125, s[12:15], s48 offen sc1
        s_waitcnt vmcnt(0)
        v_cmp_ne_u32 vcc, s6, v34
        v_cmp_ne_u32 s[52:53], s6, v35
        s_or_b64 vcc, vcc, s[52:53]
        s_cbranch_scc0 L_c_mlok
        s_sleep 4
        s_sub_u32 s7, s7, 1
        s_cbranch_scc0 L_c_ml
        s_endpgm
        L_c_mlok:
        v_mov_b32 v36, v32""")
        s.rowred('v_max_f32',36)
        A("""v_sub_f32 v32, v32, v36
        v_sub_f32 v37, v124, v36
        v_exp_f32 v32, v32
        v_exp_f32 v37, v37
        v_mul_f32 v33, v33, v32""")
        s.rowred('v_add_f32',33)
        A("""v_rcp_f32 v33, v33
        s_nop 0
        v_mul_f32 v127, v37, v33
        L_c_noml:""")
        s.poll(F_LAND,'s43',sleep=s.csleep,cache='s50')
        A("v_add_u32 v125, s42, v5\nds_read_b128 v[120:123], v7")
        k=0
        for t in range(4):
            for ty in range(3):
                A(f"ds_read_b128 v[{32+4*k}:{35+4*k}], v125 offset:{t*3072+ty*256}")
                k+=1
        A("s_add_u32 s44, s44, 1\nv_mov_b32 v2, s44\nv_add_u32 v7, 128, v7\ns_waitcnt lgkmcnt(12)")
        for t in range(4):
            for r in range(4):
                A(f"v_and_b32 v{104+4*t+r}, v{120+t}, v{100+r}")
        k=0
        for t in range(4):
            for ty in range(3):
                d=88+4*ty
                A(f"s_waitcnt lgkmcnt({11-k})")
                A(f"v_mfma_f32_16x16x32_bf16 v[{d}:{d+3}], v[{32+4*k}:{35+4*k}], v[{104+4*t}:{107+4*t}], v[{d}:{d+3}]")
                k+=1
        A(f"ds_write_b32 v3, v2 offset:{F_FREE}")
        adv()
        A("s_cmp_lt_u32 s45, 16\ns_cbranch_scc1 L_c_v")
        A(f"""s_mul_i32 s47, s41, 1536
        s_mul_i32 s48, s40, 768
        s_add_u32 s47, s47, s48
        s_add_u32 s47, s47, {OB}
        v_bfe_u32 v32, v0, 3, 1
        v_lshrrev_b32 v33, 4, v0
        v_and_b32 v34, 7, v0
        v_lshlrev_b32 v125, 9, v32
        v_lshl_add_u32 v125, v33, 6, v125
        v_lshl_add_u32 v125, v34, 3, v125
        v_add_u32 v125, s47, v125
        v_lshlrev_b32 v32, 9, v32
        v_sub_u32 v126, v125, v32""")
        for r in range(4):
            A(f"v_mov_b32_dpp v{88+r}, v{96+r} quad_perm:[0,1,2,3] row_mask:0xf bank_mask:0xc")
        for r in range(8):
            A(f"v_mul_f32 v{88+r}, v127, v{88+r}")
        A(f"""v_cvt_pk_bf16_f32 v32, v88, v89
        v_cvt_pk_bf16_f32 v33, v90, v91
        v_cvt_pk_bf16_f32 v34, v92, v93
        v_cvt_pk_bf16_f32 v35, v94, v95
        ds_write_b64 v125, v[32:33]
        s_mov_b32 exec_lo, 0x00ff00ff
        s_mov_b32 exec_hi, 0xff00ff00
        ds_write_b64 v126, v[34:35] offset:256
        s_mov_b64 exec, 1
        v_mov_b32 v2, 1
        s_waitcnt lgkmcnt(0)
        ds_add_u32 v1, v2 offset:{F_O}
        s_mov_b64 exec, -1
        s_add_u32 s41, s41, 1
        s_cmp_lt_u32 s41, 2
        s_cbranch_scc1 L_c_seg""")
        s.stamp(4)
        A("s_endpgm")

    def gather8(s, voff, sbase, stride, d0, vt, vtag, sleep=2):
        A=s.A
        l=s.lab('g8'); ok=s.lab('g8ok')
        A(f"{l}:")
        for j in range(8):
            if j*stride<4096:
                A(f"buffer_load_dwordx4 v[{d0+4*j}:{d0+4*j+3}], v{voff}, s[12:15], {sbase} offen offset:{j*stride} sc1")
            else:
                if (j-1)*stride<4096 : A(f"s_add_u32 s49, {sbase}, {j*stride}"); j0=j
                A(f"buffer_load_dwordx4 v[{d0+4*j}:{d0+4*j+3}], v{voff}, s[12:15], s49 offen offset:{(j-j0)*stride} sc1")
        A(f"v_mov_b32 v{vt}, 0")
        for j in range(8):
            A(f"s_waitcnt vmcnt({7-j})")
            for r in range(4):
                A(f"v_bitop3_b32 v{vt}, v{vt}, v{d0+4*j+r}, s6 bitop3:0xf6")
        A(f"""v_and_b32 v{vt}, 0xff, v{vt}
        v_cmp_ne_u32 vcc, 0, v{vt}
        s_cbranch_vccz {ok}
        s_sleep {sleep}
        s_sub_u32 s7, s7, 1
        s_cbranch_scc0 {l}
        s_endpgm
        {ok}:""")
        for i in range(32):
            A(f"v_and_b32 v{d0+i}, 0xffffff00, v{d0+i}")
        for st in (16,8,4):
            for i in range(st):
                A(f"v_add_f32 v{d0+i}, v{d0+i}, v{d0+i+st}")

    def aux(s):
        A=s.A
        A("L_aux:")
        s.srd(8,32,1966080)
        A("""v_min_u32 v4, 47, v0
        v_lshlrev_b32 v5, 4, v4
        v_lshrrev_b32 v6, 3, v4
        v_lshlrev_b32 v6, 6, v6
        v_and_b32 v7, 7, v4
        v_lshl_add_u32 v6, v7, 1, v6""")
        s.masks(100,10,11)
        A("s_waitcnt lgkmcnt(0)\ns_barrier\ns_add_u32 s6, s6, 1\ns_mov_b32 s41, 0")
        s.poll(F_S1,5,sleep=2)
        A("L_a_q:")
        if s.order: A("s_xor_b32 s42, s41, s4\ns_and_b32 s42, s42, 1")
        else: A("s_mov_b32 s42, s41")
        A(f"""s_lshl_b32 s43, s4, 1
        s_add_u32 s42, s42, s43
        s_mul_i32 s42, s42, 6144
        s_add_u32 s42, s42, {QG}""")
        s.gather8(5,'s42',768,8,3,None,sleep=s.asleep)
        A(f"""v_cvt_pk_bf16_f32 v8, v8, v9
        v_cvt_pk_bf16_f32 v10, v10, v11
        ds_write_b16 v6, v8 offset:{QB}
        ds_write_b16_d16_hi v6, v8 offset:{QB+16}
        ds_write_b16 v6, v10 offset:{QB+32}
        ds_write_b16_d16_hi v6, v10 offset:{QB+48}
        s_add_u32 s41, s41, 1
        v_mov_b32 v2, s41
        v_add_u32 v6, 384, v6
        s_waitcnt lgkmcnt(0)
        ds_write_b32 v1, v2 offset:{F_Q}""")
        if s.TS==1:
            A("s_cmp_eq_u32 s41, 1\ns_cbranch_scc0 L_a_ns")
            s.stamp(2)
            A("L_a_ns:")
        A("s_cmp_lt_u32 s41, 2\ns_cbranch_scc1 L_a_q")
        A(f"""v_and_b32 v4, 15, v0
        v_lshrrev_b32 v9, 4, v0
        v_mul_u32_u24 v5, 1280, v9
        v_lshl_add_u32 v5, v4, 4, v5
        v_lshlrev_b32 v6, 30, v9
        v_and_b32 v6, 0x80000000, v6
        v_or_b32 v6, v6, v5
        s_lshl_b32 s42, s4, 3
        s_add_u32 s42, s42, s5
        s_mul_i32 s43, s42, {6*1280}
        s_add_u32 s44, s43, {4*1280}""")
        for c in range(5):
            A(f"buffer_load_dwordx4 v[{40+4*c}:{43+4*c}], v5, s[8:11], s43 offen offset:{256*c} nt")
        for c in range(5):
            A(f"buffer_load_dwordx4 v[{60+4*c}:{63+4*c}], v6, s[8:11], s44 offen offset:{256*c} nt")
        A(f"""v_bfe_u32 v4, v0, 1, 1
        v_lshl_add_u32 v4, v4, 2, v9
        v_min_u32 v4, 5, v4
        s_mul_i32 s45, s5, 6
        v_add_u32 v4, s45, v4
        v_lshrrev_b32 v5, 5, v4
        v_lshlrev_b32 v5, 4, v5
        v_and_b32 v6, 8, v0
        v_add_u32 v5, v5, v6
        v_and_b32 v6, 7, v4
        v_add_u32 v5, v5, v6
        v_lshlrev_b32 v5, 4, v5
        v_and_b32 v6, 1, v0
        v_lshl_add_u32 v5, v6, 9, v5
        v_bfe_u32 v7, v4, 3, 2
        s_lshl_b32 s42, s4, 13
        s_add_u32 s42, s42, {GG}""")
        s.gather8(5,'s42',1024,8,3,None,sleep=s.asleep)
        for r in (1,2,3):
            A(f"v_cmp_eq_u32 vcc, {r}, v7\ns_nop 1\nv_cndmask_b32 v8, v8, v{8+r}, vcc")
        A(f"""v_cvt_pk_bf16_f32 v8, v8, v8
        v_and_b32 v8, 0xffff0000, v8
        v_mul_f32 v9, {f2u(-1.4426950408889634):#x}, v8
        v_exp_f32 v9, v9
        s_nop 0
        v_add_f32 v9, 1.0, v9
        v_rcp_f32 v9, v9
        s_nop 0
        v_cvt_pk_bf16_f32 v9, v9, v9
        v_and_b32 v9, 0xffff0000, v9
        s_nop 1
        v_mov_b32_dpp v10, v9 quad_perm:[0,0,0,0] {DPPF}
        v_mov_b32_dpp v11, v9 quad_perm:[2,2,2,2] {DPPF}
        s_nop 0
        v_mul_f32_dpp v10, v8, v10 quad_perm:[1,1,1,1] {DPPF}
        v_mul_f32_dpp v11, v8, v11 quad_perm:[3,3,3,3] {DPPF}
        v_cvt_pk_bf16_f32 v10, v10, v10
        v_cvt_pk_bf16_f32 v11, v11, v11
        v_cmp_gt_u32 vcc, 32, v0
        s_nop 1
        v_cndmask_b32 v11, 0, v11, vcc""")
        for r in range(4):
            A(f"v_and_b32 v{12+r}, v10, v{100+r}\nv_and_b32 v{16+r}, v11, v{100+r}")
        A("s_waitcnt vmcnt(0)")
        for c in range(5):
            A(f"v_mfma_f32_16x16x32_bf16 v[{80+4*c}:{83+4*c}], v[{40+4*c}:{43+4*c}], v[12:15], 0")
        for c in range(5):
            A(f"v_mfma_f32_16x16x32_bf16 v[{80+4*c}:{83+4*c}], v[{60+4*c}:{63+4*c}], v[16:19], v[{80+4*c}:{83+4*c}]")
        A("v_bfe_u32 v4, v0, 3, 1")
        if s.order: A("s_and_b32 s42, s4, 1\nv_xor_b32 v4, s42, v4")
        A(f"""v_mul_u32_u24 v4, 2560, v4
        v_lshrrev_b32 v5, 5, v0
        v_lshl_add_u32 v4, v5, 8, v4
        v_and_b32 v5, 7, v0
        v_lshl_add_u32 v4, v5, 4, v4
        v_bfe_u32 v5, v0, 4, 1
        v_lshl_add_u32 v4, v5, 3, v4
        v_add_u32 v4, {YL}, v4""")
        for c in range(5):
            d=80+4*c
            A(f"ds_write2_b32 v4, v{d}, v{d+2} offset0:0 offset1:1")
            A(f"ds_write2_b32 v4, v{d+1}, v{d+3} offset0:32 offset1:33")
            if c<4: A("v_add_u32 v4, 512, v4")
        A(f"""v_mov_b32 v2, 1
        s_waitcnt lgkmcnt(0)
        ds_write_b32 v1, v2 offset:{F_Y}""")
        if s.mon: s.monitor()
        A("s_endpgm")

    def monitor(s):
        A=s.A; P=s.per; LS=s.ls; R=s.reps
        A(f"""s_and_b32 s45, s4, {R-1}
        s_mul_i32 s49, s45, {LS}
        s_add_u32 s49, s49, {PG2}
        s_lshr_b32 s43, s4, 2
        s_mul_i32 s43, s43, {4*LS}
        s_add_u32 s43, s43, s49
        s_and_b32 s42, s4, {3-(R-1)}
        s_or_b32 s42, s42, s5
        s_lshl_b32 s44, s6, 8
        ds_read_b32 v2, v1 offset:{F_LAND}
        s_waitcnt lgkmcnt(0)
        v_readfirstlane_b32 s50, v2
        s_add_u32 s41, s50, {P}
        s_and_b32 s41, s41, {~(P-1)&0xffffffff:#x}
        L_m_loop:
        s_cmp_gt_u32 s41, {128-P}
        s_cbranch_scc1 L_m_end
        s_cmp_eq_u32 s42, 0
        s_cbranch_scc0 L_m_nopub""")
        s.poll(F_LAND,'s41',sleep=2,cache='s50')
        A(f"""s_add_u32 s45, s44, s41
        v_mov_b32 v6, s45
        s_mov_b64 exec, 1
        buffer_store_dword v6, v1, s[12:15], s43 offen sc1
        s_mov_b64 exec, -1
        L_m_nopub:""")
        A(f"s_add_u32 s45, s41, {s.rph}")
        s.poll(F_LAND,'s45',sleep=2,cache='s50')
        for i in range(8): A(f"s_load_dword s{72+i}, s[38:39], s49 offset:{i*4*LS} glc")
        A(f"""s_add_u32 s45, s44, s41
        s_add_u32 s45, s45, {s.da}
        s_sub_u32 s46, s41, {s.db}
        s_mov_b32 s47, 0
        s_mov_b32 s48, 0
        s_waitcnt lgkmcnt(0)""")
        for i in range(8):
            A(f"s_sub_u32 s55, s{72+i}, s45\ns_cmp_lt_u32 s55, 128\ns_addc_u32 s47, s47, 0")
            A(f"s_sub_u32 s55, s{72+i}, s44\ns_cmp_lt_u32 s55, s46\ns_addc_u32 s48, s48, 0")
        A(f"""s_cmp_ge_u32 s48, {s.tb}
        s_cselect_b32 s48, 2, 0
        s_cmp_ge_u32 s47, {s.ta}
        s_cselect_b32 s48, 1, s48
        v_mov_b32 v2, s48
        ds_write_b32 v1, v2 offset:{F_MODE}""")
        A(f"""s_add_u32 s41, s41, {P}
        s_branch L_m_loop
        L_m_end:""")

    def stage1(s):
        A=s.A
        A("L_stage1:")
        s.srd(40,16,2560)
        A("""v_bfe_u32 v2, v0, 3, 1
        v_mul_u32_u24 v2, 1280, v2
        v_lshrrev_b32 v116, 4, v0
        v_and_b32 v117, 7, v0
        v_lshl_add_u32 v3, v116, 3, v117
        v_mul_u32_u24 v3, 40, v3
        v_add_u32 v3, v3, v2
        buffer_load_dwordx4 v[4:7], v3, s[40:43], 0 offen
        buffer_load_dwordx4 v[8:11], v3, s[40:43], 0 offen offset:16
        buffer_load_dwordx2 v[12:13], v3, s[40:43], 0 offen offset:32
        v_lshl_add_u32 v2, v116, 2, v2
        s_mul_i32 s44, s5, 160""")
        for Gi in range(10):
            A(f"buffer_load_dword v{14+Gi}, v2, s[40:43], s44 offen offset:{16*Gi}")
        A(f"""s_sub_u32 s45, s3, 4
        s_cmp_eq_u32 s45, 3
        s_cselect_b32 s8, s28, s30
        s_cselect_b32 s9, s29, s31
        s_mul_i32 s46, s4, 96
        s_mul_i32 s47, s4, 384
        s_lshl_b32 s48, s45, 7
        s_add_u32 s47, s47, s48
        s_cmp_lt_u32 s45, 3
        s_cselect_b32 s8, s22, s8
        s_cselect_b32 s9, s23, s9
        s_cselect_b32 s10, 7864320, 1966080
        s_mov_b32 s11, 0x20000
        s_cselect_b32 s46, s47, s46
        s_cselect_b32 s47, 12288, 3072
        s_cselect_b32 s48, 8, 6
        v_lshrrev_b32 v118, 3, v0
        v_mul_lo_u32 v118, v118, s47
        v_lshl_add_u32 v118, v117, 4, v118
        v_cmp_le_u32 vcc, s48, v117
        v_mov_b32 v119, 0x80000000
        s_mul_i32 s48, s5, 80
        s_mul_i32 s48, s48, s47
        v_cndmask_b32 v118, v118, v119, vcc
        s_add_u32 s46, s46, s48
        s_lshl_b32 s47, s47, 3""".replace("s_cselect_b32 s10, 7864320, 1966080","s_mov_b32 s10, 1966080\ns_cselect_b32 s10, 7864320, s10").replace("s_cselect_b32 s47, 12288, 3072","s_movk_i32 s47, 3072\ns_cselect_b32 s47, 12288, s47"))
        for Gi in range(10):
            A(f"buffer_load_dwordx4 v[{24+4*Gi}:{27+4*Gi}], v118, s[8:11], s46 offen nt")
            if Gi<9: A("s_add_u32 s46, s46, s47")
        A("s_barrier")
        s.masks(92,2,3)
        A("v_mov_b32 v2, 0x0c0c0c0c\ns_mov_b32 s48, 0x01000100\ns_mov_b32 s49, 0x03020302")
        for r in range(4):
            A(f"v_bfi_b32 v{84+r}, v{92+r}, s48, v2\nv_bfi_b32 v{88+r}, v{92+r}, s49, v2")
        A("s_waitcnt vmcnt(20)")
        for i in range(10):
            A(f"v_lshlrev_b32 v{64+2*i}, 16, v{4+i}\nv_and_b32 v{65+2*i}, 0xffff0000, v{4+i}")
        for i in range(10): A(f"v_add_f32 v{4+i}, v{64+2*i}, v{65+2*i}")
        for i in range(5): A(f"v_add_f32 v{4+i}, v{4+i}, v{9+i}")
        A("v_add_f32 v4, v4, v5\nv_add_f32 v6, v6, v7\nv_add_f32 v4, v4, v8\nv_add_f32 v4, v4, v6")
        def red32(v,t):
            for c in ("quad_perm:[1,0,3,2]","quad_perm:[2,3,0,1]","row_half_mirror"):
                A(f"s_nop 1\nv_add_f32_dpp v{v}, v{v}, v{v} {c} {DPPF}")
            s.swapred('v_add_f32',v,t,16)
            s.swapred('v_add_f32',v,t,32)
        red32(4,5)
        A(f"v_mul_f32 v4, {f2u(1/640):#x}, v4")
        for i in range(20): A(f"v_sub_f32 v{64+i}, v{64+i}, v4")
        for i in range(4): A(f"v_mul_f32 v{6+i}, v{64+i}, v{64+i}")
        for i in range(4,20): A(f"v_fmac_f32 v{6+i%4}, v{64+i}, v{64+i}")
        A("v_add_f32 v6, v6, v7\nv_add_f32 v8, v8, v9\nv_add_f32 v6, v6, v8")
        red32(6,5)
        A(f"""v_mul_f32 v6, {f2u(1/640):#x}, v6
        v_cvt_pk_bf16_f32 v4, v4, v6
        v_and_b32 v6, 0xffff0000, v4
        v_lshlrev_b32 v4, 16, v4
        v_add_f32 v6, {f2u(1e-5):#x}, v6
        v_cvt_pk_bf16_f32 v6, v6, v6
        v_and_b32 v6, 0xffff0000, v6
        v_sqrt_f32 v6, v6
        s_nop 0
        v_cvt_pk_bf16_f32 v6, v6, v6
        v_and_b32 v6, 0xffff0000, v6
        v_rcp_f32 v6, v6
        s_waitcnt vmcnt(10) lgkmcnt(0)
        s_add_u32 s6, s6, 1""")
        for i in range(10):
            A(f"v_lshlrev_b32 v{64+2*i}, 16, v{14+i}\nv_and_b32 v{65+2*i}, 0xffff0000, v{14+i}")
        for i in range(20): A(f"v_sub_f32 v{64+i}, v{64+i}, v4")
        for i in range(10): A(f"v_cvt_pk_bf16_f32 v{14+i}, v{64+2*i}, v{65+2*i}")
        for i in range(10):
            A(f"v_lshlrev_b32 v{64+2*i}, 16, v{14+i}\nv_and_b32 v{65+2*i}, 0xffff0000, v{14+i}")
        for i in range(20): A(f"v_mul_f32 v{64+i}, v{64+i}, v6")
        for i in range(10): A(f"v_cvt_pk_bf16_f32 v{14+i}, v{64+2*i}, v{65+2*i}")
        for Gi in range(10):
            b=92+8*(Gi&1)
            for r in range(8):
                A(f"v_perm_b32 v{b+r}, v{14+Gi}, v{14+Gi}, v{84+r}")
            if Gi>0:
                pb=92+8*((Gi-1)&1); w=24+4*(Gi-1)
                A(f"s_waitcnt vmcnt({10-Gi})")
                A(f"v_mfma_f32_16x16x32_bf16 v[108:111], v[{w}:{w+3}], v[{pb}:{pb+3}], {'0' if Gi==1 else 'v[108:111]'}")
                A(f"v_mfma_f32_16x16x32_bf16 v[112:115], v[{w}:{w+3}], v[{pb+4}:{pb+7}], {'0' if Gi==1 else 'v[112:115]'}")
        A("s_waitcnt vmcnt(0)")
        A("v_mfma_f32_16x16x32_bf16 v[108:111], v[60:63], v[100:103], v[108:111]")
        A("v_mfma_f32_16x16x32_bf16 v[112:115], v[60:63], v[104:107], v[112:115]")
        A(f"""v_bfe_u32 v2, v0, 3, 1
        v_mul_u32_u24 v2, 6144, v2
        v_lshl_add_u32 v3, v116, 3, v117
        v_lshl_add_u32 v2, v3, 4, v2
        v_lshlrev_b32 v3, 4, v0
        s_mul_i32 s46, s4, 12288
        s_mul_i32 s47, s5, 768
        s_add_u32 s46, s46, s47
        s_lshl_b32 s47, s45, 8
        s_add_u32 s46, s46, s47
        s_add_u32 s46, s46, {QG}
        s_lshl_b32 s47, s4, 3
        s_add_u32 s47, s47, s5
        s_lshl_b32 s47, s47, 1
        s_add_u32 s47, s47, s45
        s_lshl_b32 s47, s47, 9
        s_add_u32 s47, s47, {GG-3*512}
        s_cmp_lt_u32 s45, 3
        s_cselect_b32 s46, s46, s47
        s_cselect_b64 vcc, -1, 0
        v_cndmask_b32 v2, v3, v2, vcc
        v_mov_b32 v3, 0xff""")
        for r in range(4):
            A(f"v_permlane32_swap_b32 v{112+r}, v{4+r}")
        for r in range(4):
            A(f"v_add_f32 v{108+r}, v{108+r}, v{4+r}")
        for r in range(4):
            A(f"v_bfi_b32 v{108+r}, v3, s6, v{108+r}")
        A("""s_mov_b32 exec_hi, 0
        buffer_store_dwordx4 v[108:111], v2, s[12:15], s46 offen sc1
        s_mov_b64 exec, 1
        v_mov_b32 v3, 1
        ds_add_u32 v1, v3 offset:%d
        s_mov_b64 exec, -1"""%F_S1)
        if s.TS:
            A("s_cmp_eq_u32 s3, 4\ns_cbranch_scc0 L_s1_ns")
            s.stamp(6)
            A("L_s1_ns:")
        A("s_branch L_hold")

    def holder(s):
        A=s.A
        A("L_hold_bar:\ns_waitcnt lgkmcnt(0)\ns_barrier\ns_add_u32 s6, s6, 1")
        A("L_hold:")
        s.srd(8,24,7864320)
        A("s_sub_u32 s40, s3, 4")
        s.masks(4,2,3)
        A("""v_lshrrev_b32 v8, 4, v0
        v_bfe_u32 v9, v0, 3, 1
        v_sub_u32 v9, v8, v9
        v_mov_b32 v10, 0x3f803f80""")
        for sidx in range(2):
            A(f"v_cmp_eq_u32 vcc, {2*sidx}, v9\ns_nop 1\nv_cndmask_b32 v11, 0, v10, vcc")
            for r in range(4):
                A(f"v_and_b32 v{20+4*sidx+r}, v11, v{4+r}")
        A(f"""v_and_b32 v3, 3, v0
        v_lshlrev_b32 v3, 2, v3
        v_bfe_u32 v9, v0, 2, 1
        v_add_u32 v3, v3, v9
        v_mul_u32_u24 v3, 2560, v3
        v_lshl_add_u32 v3, v8, 4, v3
        v_and_b32 v9, 8, v0
        v_lshl_add_u32 v3, v9, 3, v3
        s_mul_i32 s41, s4, {192*1280}
        s_lshl_b32 s42, s40, 7
        s_add_u32 s41, s41, s42
        s_mov_b32 s50, 0""")
        A("s_mov_b32 s44, s40")
        A(f"L_h_mod:\ns_cmp_lt_u32 s44, {s.pace}\ns_cbranch_scc1 L_h_modd\ns_sub_u32 s44, s44, {s.pace}\ns_branch L_h_mod\nL_h_modd:")
        A(f"s_add_u32 s44, s44, {s.pace0}")
        F=lambda tile,B: 32+4*(B*4+tile)
        for B in range(6):
            A(f"s_add_u32 s42, s41, {4*1280}")
            for t in range(2):
                for gh in range(2):
                    s.poll(F_LAND, 's44', sleep=8, cache='s50')
                    f=F(2*t+gh,B)
                    if not s.nowo: A(f"buffer_load_dwordx4 v[{f}:{f+3}], v3, s[8:11], {'s42' if gh else 's41'} offen offset:{1280*t} nt")
                    A(f"s_add_u32 s44, s44, {s.pace}")
            A(f"s_add_u32 s41, s41, {32*1280}\ns_waitcnt vmcnt(0)")
            for t in range(2):
                f0=F(2*t,B); f1=F(2*t+1,B)
                A(f"v_mfma_f32_16x16x32_bf16 v[4:7], v[{f0}:{f0+3}], v[20:23], 0")
                A(f"v_mfma_f32_16x16x32_bf16 v[8:11], v[{f1}:{f1+3}], v[20:23], 0")
                A(f"v_mfma_f32_16x16x32_bf16 v[12:15], v[{f0}:{f0+3}], v[24:27], 0")
                A(f"v_mfma_f32_16x16x32_bf16 v[16:19], v[{f1}:{f1+3}], v[24:27], 0")
                A("s_nop 7")
                for sidx in range(2):
                    for gh in range(2):
                        tile=2*gh+sidx
                        if t==0 and tile>=2: dst=28+2*(tile-2)
                        else: dst=F(tile,B)+2*t
                        src=4+8*sidx+4*gh
                        A(f"v_cvt_pk_bf16_f32 v{dst}, v{src}, v{src+1}\nv_cvt_pk_bf16_f32 v{dst+1}, v{src+2}, v{src+3}")
            for i in range(2):
                A(f"v_mov_b32 v{F(2,B)+i}, v{28+i}\nv_mov_b32 v{F(3,B)+i}, v{30+i}")
            A("s_nop 1")
            for sidx in range(2):
                for i in range(4):
                    A(f"v_permlane32_swap_b32 v{F(sidx,B)+i}, v{F(2+sidx,B)+i}")
        s.poll(F_Y, 1, sleep=8)
        A(f"""v_and_b32 v3, 3, v0
        v_mul_u32_u24 v3, 384, v3
        v_lshrrev_b32 v2, 4, v0
        v_lshl_add_u32 v3, v2, 4, v3
        v_and_b32 v0, 15, v0
        v_lshlrev_b32 v0, 4, v0
        s_mov_b32 s41, 0
        s_lshl_b32 s42, s40, 8
        s_lshl_b32 s43, s4, 3
        s_add_u32 s43, s43, s5
        s_mul_i32 s43, s43, 2560
        s_add_u32 s43, s43, s42
        s_add_u32 s43, s43, {YG}
        s_add_u32 s42, s42, {YL}
        s_mov_b32 s44, 62
        s_mov_b32 s45, 2""")
        A("L_h_seg:")
        A("v_add_u32 v2, s42, v0\nds_read_b128 v[20:23], v2")
        for t in range(4):
            for r in range(1,4): A(f"v_mov_b32 v{4+4*t+r}, 0")
        A("s_waitcnt lgkmcnt(0)")
        for t in range(4): A(f"v_mov_b32 v{4+4*t}, v{20+t}")
        s.poll(F_LAND,'s44',sleep=16,cache='s50')
        s.poll(F_O,'s45',sleep=1)
        for B in range(3):
            A(f"ds_read_b128 v[{20+4*B}:{23+4*B}], v3 offset:{OB+64*B}")
        for B in range(6):
            a=20+4*(B%3)
            A(f"s_waitcnt lgkmcnt({2 if B<4 else 5-B})")
            for t in range(4):
                f=F(t,B)
                A(f"v_mfma_f32_16x16x32_bf16 v[{4+4*t}:{7+4*t}], v[{a}:{a+3}], v[{f}:{f+3}], v[{4+4*t}:{7+4*t}]")
            if B<3: A(f"ds_read_b128 v[{a}:{a+3}], v3 offset:{OB+64*(B+3)}")
        A("v_mov_b32 v2, 0xff\ns_nop 3")
        for t in range(4):
            d=4+4*t
            A(f"v_add_f32 v{d}, v{d}, v{d+1}\nv_add_f32 v{d+2}, v{d+2}, v{d+3}")
        for t in range(4):
            d=4+4*t
            A(f"v_add_f32 v{20+t}, v{d}, v{d+2}")
        for t in range(4):
            A(f"v_bfi_b32 v{20+t}, v2, s6, v{20+t}")
        if s.ydef: s.poll(F_LAND, s.ydef, sleep=8, cache='s50')
        A(f"""s_mov_b64 exec, 0xffff
        buffer_store_dwordx4 v[20:23], v0, s[12:15], s43 offen sc1
        s_mov_b64 exec, -1
        v_add_u32 v3, 1536, v3
        s_add_u32 s42, s42, 2560
        s_add_u32 s43, s43, {256*2560}
        s_add_u32 s44, s44, 64
        s_add_u32 s45, s45, 2
        s_add_u32 s41, s41, 1
        s_cmp_lt_u32 s41, 2
        s_cbranch_scc1 L_h_seg""")
        if s.TS:
            A("s_cmp_eq_u32 s3, 4\ns_cbranch_scc0 L_h_ns")
            s.stamp(5)
            A("s_cmp_ge_u32 s2, 80\ns_cbranch_scc0 L_h_ns")
            s.stamp(1)
            A("L_h_ns:")
        A("s_endpgm")

    def final(s):
        A=s.A
        A("L_final:\ns_waitcnt lgkmcnt(0)\ns_barrier")
        A("s_cmp_ge_u32 s2, 80\ns_cbranch_scc1 L_end")
        A("s_add_u32 s6, s6, 1")
        s.srd(40,16,2560)
        s.srd(8,34,2560)
        A(f"""s_and_b32 s44, s2, 7
        s_mul_i32 s44, s44, 10
        s_lshr_b32 s45, s2, 3
        s_add_u32 s44, s44, s45
        s_lshl_b32 s44, s44, 1
        s_add_u32 s44, s44, s3
        s_sub_u32 s44, s44, 14
        s_cmp_ge_u32 s44, 80
        s_cselect_b32 s45, 1, 0
        s_cselect_b32 s46, 80, 0
        s_sub_u32 s44, s44, s46""")
        A(f"""s_lshr_b32 s46, s44, 3
        s_lshl_b32 s46, s46, 7
        s_and_b32 s47, s44, 7
        s_lshl_b32 s47, s47, 2
        s_add_u32 s46, s46, s47
        s_mul_i32 s47, s45, 1280
        s_add_u32 s46, s46, s47
        v_bfe_u32 v4, v0, 4, 1
        v_lshlrev_b32 v4, 6, v4
        v_lshrrev_b32 v5, 5, v0
        v_lshl_add_u32 v4, v5, 5, v4
        v_and_b32 v5, 1, v0
        v_lshl_add_u32 v4, v5, 1, v4
        v_add_u32 v4, s46, v4
        buffer_load_ushort v6, v4, s[40:43], 0 offen
        v_lshrrev_b32 v7, 4, v0
        v_lshlrev_b32 v7, 4, v7
        v_bfe_u32 v3, v0, 1, 3
        v_add_u32 v7, v7, v3
        v_mul_u32_u24 v7, 2560, v7
        v_lshl_add_u32 v7, v5, 4, v7
        s_lshl_b32 s44, s44, 5
        s_add_u32 s44, s44, {YG}
        s_mov_b32 s47, 0
        s_mov_b32 s48, {s.fin0}
        s_mov_b32 s49, 2
        s_mov_b32 s50, 0""")
        for r in range(4): A(f"v_mov_b32 v{24+r}, 0")
        A("L_f_seg:")
        if s.order:
            A(f"s_xor_b32 s51, s45, s47\ns_mul_i32 s51, s51, {8*2560}\ns_add_u32 s51, s51, s44")
        else:
            raise NotImplementedError
        for j in range(1,4): A(f"s_add_u32 s{51+j}, s51, {j*64*2560}")
        for j in range(4): A(f"s_mov_b64 s[{56+2*j}:{57+2*j}], -1")
        s.poll(F_LAND,'s48',sleep=16,cache='s50')
        s.poll(F_O,'s49',sleep=2)
        A("L_f_poll:")
        for j in range(4):
            A(f"""s_mov_b64 exec, s[{56+2*j}:{57+2*j}]
            s_cbranch_execz L_f_sk{j}
            buffer_load_dwordx4 v[{8+4*j}:{11+4*j}], v7, s[12:15], s{51+j} offen sc1
            L_f_sk{j}:""")
        A("s_mov_b64 exec, -1\ns_waitcnt vmcnt(0)")
        for j in range(4):
            d=8+4*j
            A(f"""v_xor_b32 v{28+j}, s6, v{d}
            v_bitop3_b32 v{28+j}, v{28+j}, v{d+1}, s6 bitop3:0xf6
            v_bitop3_b32 v{28+j}, v{28+j}, v{d+2}, s6 bitop3:0xf6
            v_bitop3_b32 v{28+j}, v{28+j}, v{d+3}, s6 bitop3:0xf6""")
        A("s_nop 0")
        for j in range(4):
            A(f"v_or_b32_dpp v{28+j}, v{28+j}, v{28+j} quad_perm:[1,0,3,2] {DPPF}")
        for j in range(4):
            A(f"v_and_b32 v{28+j}, 0xff, v{28+j}")
        for j in range(4):
            A(f"v_cmp_ne_u32 s[{56+2*j}:{57+2*j}], 0, v{28+j}")
        A("""s_or_b64 s[64:65], s[56:57], s[58:59]
        s_or_b64 s[66:67], s[60:61], s[62:63]
        s_or_b64 s[64:65], s[64:65], s[66:67]
        s_cbranch_scc0 L_f_ok
        s_sleep 1
        s_sub_u32 s7, s7, 1
        s_cbranch_scc0 L_f_poll
        s_endpgm
        L_f_ok:""")
        for i in range(16): A(f"v_and_b32 v{8+i}, 0xffffff00, v{8+i}")
        for i in range(8): A(f"v_add_f32 v{8+i}, v{8+i}, v{16+i}")
        for i in range(4): A(f"v_add_f32 v{24+i}, v{24+i}, v{12+i}")
        for i in range(4): A(f"v_add_f32 v{24+i}, v{24+i}, v{8+i}")
        A(f"""s_add_u32 s44, s44, {256*2560}
        s_mov_b32 s48, 126
        s_add_u32 s49, s49, 2
        s_add_u32 s47, s47, 1
        s_cmp_lt_u32 s47, 2
        s_cbranch_scc1 L_f_seg
        v_permlane32_swap_b32 v24, v25
        v_permlane32_swap_b32 v26, v27
        v_add_f32 v24, v24, v25
        v_add_f32 v26, v26, v27
        v_lshlrev_b32 v6, 16, v6
        s_nop 0
        v_permlane16_swap_b32 v24, v26
        v_add_f32 v24, v24, v26""")
        for c in ("quad_perm:[2,3,0,1]","row_ror:4","row_ror:8"):
            A(f"s_nop 1\nv_add_f32_dpp v24, v24, v24 {c} {DPPF}")
        A("""v_add_f32 v24, v24, v6
        v_cvt_pk_bf16_f32 v24, v24, v24
        s_mov_b32 exec_lo, 0x00030003
        s_mov_b32 exec_hi, 0x00030003
        buffer_store_short v24, v4, s[8:11], 0 offen
        s_mov_b64 exec, 1
        s_cmp_eq_u32 s2, 0
        s_cbranch_scc0 L_f_noep
        s_cmp_eq_u32 s3, 14
        s_cbranch_scc0 L_f_noep
        v_mov_b32 v2, s6
        buffer_store_dword v2, v1, s[12:15], 0 offen
        L_f_noep:
        s_mov_b64 exec, -1""")
        if s.TS:
            A("s_cmp_eq_u32 s3, 14\ns_cbranch_scc0 L_end")
            s.stamp(1)
        A("L_end:")

    def build(s):
        s.prologue(); s.loader(); s.common2(); s.consumer(); s.aux(); s.stage1(); s.holder(); s.final()
        errs=hazard.check(s.L)
        for e in errs: print(e)
        if errs: raise SystemExit("hazards")
        return "\n".join(("    "+l if not l.endswith(':') else l) for l in s.L)

HEADER=open('parallel_sum__gqa_block_cached__glu_gated_glu__decode.s.ref').read().split('; Override launch')[0]
def full(body):
    return HEADER+f"; @launch grid=(256,1,1) block=(1024,1,1) lds={LDS_BYTES}\n"+wrap(NAME,body,128,128,sgpr=96)

if __name__=="__main__":
    if len(sys.argv)>1 and sys.argv[1]=='bench':
        cfgs=eval(sys.argv[2]); args=[]; files=[]
        for c in cfgs:
            nm="k_"+"_".join(f"{k}{v}" for k,v in c.items())
            body=G(**c).build()
            build(nm,NAME,wrap(NAME,body,128,128,sgpr=96),128,1024,sgpr=96)
            args+=[f"work/{nm}.co",NAME,"256","1024",str(LDS_BYTES)]; files.append(f"work/{nm}.co")
        open('last_args.txt','w').write(" ".join(args))
        import json; print(json.dumps(["work/bench","work/last_args.txt"]+files))
    else:
        kw=eval(sys.argv[2]) if len(sys.argv)>2 else {}
        out=sys.argv[1] if len(sys.argv)>1 else 'parallel_sum__gqa_block_cached__glu_gated_glu__decode.s'
        open(out,'w').write(full(G(**kw).build()))
        print("written",out)
```
